```python
import torch

def _softmax(x, axis=-1):
    return torch.softmax(x, dim=axis)
def _gelu(x):
    return torch.nn.functional.gelu(x, approximate="tanh")
def _silu(x):
    return torch.nn.functional.silu(x)
def _sigmoid(x):
    return torch.sigmoid(x)
def _layernorm(x, axis=-1, eps=1e-5):
    m = x.mean(dim=axis, keepdim=True)
    v = x.var(dim=axis, keepdim=True, unbiased=False)
    return (x - m) / torch.sqrt(v + eps)
def _scatter_add(tgt, idx, src, axis=0):
    return tgt.clone().index_add_(axis, idx, src)
def _segment_sum(src, seg, n):
    out = torch.zeros((n,) + src.shape[1:], dtype=src.dtype)
    return out.index_add_(0, seg, src)
def _pad(x, pw):
    flat = tuple(v for pair in reversed(pw) for v in pair)
    return torch.nn.functional.pad(x, flat)

kernel_name = 'recurrent_scan__compressed_kv_cla__geglu_ffn__decode'

def setup_inputs():

    _w = (lambda a: (lambda t: t.to(torch.bfloat16) if t.is_floating_point() else t)(torch.as_tensor(a)))
    def _A_setup():
        B, H, Sq, Sk, D, M = 2, 32, 1, 4096, 128, 576
        Dc = 4 * D
        return {
            "x": _w((lambda *s: torch.randn(*s, dtype=torch.bfloat16) * 0.05)(B, Sq, M)),
            "c_kv": _w((lambda *s: torch.randn(*s, dtype=torch.bfloat16) * 0.2)(B, Sk, Dc)),
            "w_q": _w((lambda *s: torch.randn(*s, dtype=torch.bfloat16) * 3.2)(M, H, D) * (M ** -0.5)),
            "w_uk": _w((lambda *s: torch.randn(*s, dtype=torch.bfloat16) * 3.2)(Dc, H, D) * (Dc ** -0.5)),
            "w_uv": _w((lambda *s: torch.randn(*s, dtype=torch.bfloat16) * 0.2)(Dc, H, D) * (Dc ** -0.5)),
            "w_o": _w((lambda *s: torch.randn(*s, dtype=torch.bfloat16) * 0.2)(H, D, M) * ((H * D) ** -0.5)),
        }
    _A_in = _A_setup()

    def _B_setup():
        B, S, D, F = 2, 1, 576, 4608
        return {
            "x": _w((lambda *s: torch.randn(*s, dtype=torch.bfloat16) * 0.05)(B, S, D)),
            "w_gate": _w((lambda *s: torch.randn(*s, dtype=torch.bfloat16) * 0.1)(D, F)),
            "w_up": _w((lambda *s: torch.randn(*s, dtype=torch.bfloat16) * 0.1)(D, F)),
            "w_down": _w((lambda *s: torch.randn(*s, dtype=torch.bfloat16) * 0.1)(F, D)),
        }
    _B_in = _B_setup()

    return {
        "A_x": _A_in["x"],
        "A_c_kv": _A_in["c_kv"],
        "A_w_q": _A_in["w_q"],
        "A_w_uk": _A_in["w_uk"],
        "A_w_uv": _A_in["w_uv"],
        "A_w_o": _A_in["w_o"],
        "B_x": _B_in["x"],
        "B_w_gate": _B_in["w_gate"],
        "B_w_up": _B_in["w_up"],
        "B_w_down": _B_in["w_down"],
    }

def reference(A_x, A_c_kv, A_w_q, A_w_uk, A_w_uv, A_w_o, B_x, B_w_gate, B_w_up, B_w_down):
    def _A_ref(x, c_kv, w_q, w_uk, w_uv, w_o):
        B, Sq, M = x.shape[0], x.shape[1], x.shape[2]
        Sk = c_kv.shape[1]
        H, D = w_q.shape[1], w_q.shape[2]
        q = torch.einsum("bqm,mhd->bhqd", x, w_q)
        k = torch.einsum("bkc,chd->bhkd", c_kv, w_uk)
        v = torch.einsum("bkc,chd->bhkd", c_kv, w_uv)
        scores = torch.einsum("bhqd,bhkd->bhqk", q, k) * (D ** -0.5)
        off = Sk - Sq
        qi = torch.arange(Sq)[:, None]
        kj = torch.arange(Sk)[None, :]
        cmask = kj <= (qi + off)
        scores = torch.where(cmask[None, None], scores, -1e9)
        p = _softmax(scores, axis=-1)
        ctx = torch.einsum("bhqk,bhkd->bhqd", p, v)
        return torch.einsum("bhqd,hdm->bqm", ctx, w_o)

    def _B_ref(x, w_gate, w_up, w_down):
        return (_gelu(x @ w_gate) * (x @ w_up)) @ w_down

    x = A_x
    xn = _layernorm(x, axis=-1)
    s = _A_ref(xn, A_c_kv, A_w_q, A_w_uk, A_w_uv, A_w_o)
    g = _silu(_B_ref(xn, B_w_gate, B_w_up, B_w_down))
    return x + s * g
```

```python
import re

_REG = re.compile(r'^(-|abs\()?([vsa])(\d+)\)?$')
_RNG = re.compile(r'^(-|abs\()?([vsa])\[(\d+):(\d+)\]\)?$')


def regs(tok):
    tok = tok.strip()
    m = _REG.match(tok)
    if m:
        return {(m.group(2), int(m.group(3)))}
    m = _RNG.match(tok)
    if m:
        return {(m.group(2), i) for i in range(int(m.group(3)), int(m.group(4)) + 1)}
    if tok == 'vcc':
        return {('s', 'vcc')}
    if tok in ('vcc_lo', 'vcc_hi'):
        return {('s', 'vcc')}
    if tok == 'exec':
        return {('s', 'exec')}
    if tok == 'm0':
        return {('s', 'm0')}
    return set()


def split_ops(s):
    out, depth, cur = [], 0, ''
    for ch in s:
        if ch in '[(':
            depth += 1
        if ch in '])':
            depth -= 1
        if ch == ',' and depth == 0:
            out.append(cur.strip())
            cur = ''
        else:
            cur += ch
    if cur.strip():
        out.append(cur.strip())
    return out


TRANS = ('v_exp_f32', 'v_log_f32', 'v_rcp_f32', 'v_rsq_f32', 'v_sqrt_f32', 'v_sin_f32', 'v_cos_f32')


class Ins:
    __slots__ = ('text', 'mn', 'dst', 'src', 'kind', 'dpp', 'passes', 'srcc', 'ab', 'storedata', 'lds_dma', 'wide')

    def __init__(self, text):
        self.text = text
        t = text.split(';')[0].strip()
        parts = t.split(None, 1)
        self.mn = mn = parts[0]
        rest = parts[1] if len(parts) > 1 else ''
        ops = split_ops(rest)
        plain = []
        for o in ops:
            plain.append(o.split()[0] if o.split() else o)
        self.dpp = ('_dpp' in mn) or ('quad_perm' in t) or ('row_' in t and 'row_mask' in t)
        self.dst, self.src = set(), set()
        self.passes = 0
        self.srcc, self.ab, self.storedata = set(), set(), set()
        self.lds_dma = False
        self.wide = False
        if mn.startswith('v_mfma') or mn.startswith('v_smfmac'):
            self.kind = 'mfma'
            self.dst = regs(plain[0])
            self.ab = regs(plain[1]) | regs(plain[2])
            if mn.startswith('v_smfmac'):
                self.srcc = regs(plain[0])
                self.ab |= regs(plain[3])
            else:
                self.srcc = regs(plain[3])
            self.src = self.ab | self.srcc
            if '32x32x16' in mn or '32x32x32' in mn:
                self.passes = 8
            elif '16x16x32' in mn or '16x16x64' in mn:
                self.passes = 4 if not mn.startswith('v_smfmac') else 8
            else:
                raise ValueError(mn)
        elif mn.startswith('v_'):
            self.kind = 'trans' if any(mn.startswith(x) for x in TRANS) else 'valu'
            if mn.startswith('v_nop'):
                pass
            elif mn.startswith('v_permlane'):
                self.dst = regs(plain[0]) | regs(plain[1])
                self.src = set(self.dst)
            elif mn.startswith(('v_add_co', 'v_sub_co', 'v_addc_co', 'v_subb_co', 'v_div_scale', 'v_mad_u64_u32')):
                self.dst = regs(plain[0]) | regs(plain[1])
                for p in plain[2:]:
                    self.src |= regs(p)
            else:
                self.dst = regs(plain[0])
                for p in plain[1:]:
                    self.src |= regs(p)
                if mn.startswith(('v_fmac', 'v_dot2c', 'v_pk_fmac', 'v_writelane')) or self.dpp:
                    self.src |= self.dst
                if mn.startswith('v_cndmask') and len(plain) == 3:
                    self.src |= {('s', 'vcc')}
        elif mn.startswith(('buffer_', 'global_', 'flat_')):
            self.kind = 'vmem'
            self.lds_dma = ' lds' in (' ' + rest) and mn.startswith('buffer_load') or 'load_lds' in mn
            if mn.startswith('buffer_load') and not self.lds_dma:
                self.dst = regs(plain[0])
                for p in plain[1:]:
                    self.src |= regs(p)
            elif mn.startswith('global_load') and not self.lds_dma:
                self.dst = regs(plain[0])
                for p in plain[1:]:
                    self.src |= regs(p)
            else:
                for p in plain:
                    self.src |= regs(p)
                if mn.startswith('buffer_store'):
                    self.storedata = regs(plain[0])
                elif mn.startswith('global_store'):
                    self.storedata = regs(plain[1])
                self.wide = ('x4' in mn or 'x3' in mn) and 'store' in mn
            if self.lds_dma:
                self.src |= {('s', 'm0')}
        elif mn.startswith('ds_'):
            self.kind = 'ds'
            if mn.startswith(('ds_read', 'ds_bpermute', 'ds_permute', 'ds_swizzle')):
                self.dst = regs(plain[0])
                for p in plain[1:]:
                    self.src |= regs(p)
            else:
                for p in plain:
                    self.src |= regs(p)
        elif mn.startswith('s_'):
            self.kind = 'salu'
            if mn.startswith(('s_cmp', 's_cbranch', 's_branch', 's_waitcnt', 's_barrier', 's_nop', 's_endpgm', 's_sleep', 's_setprio', 's_bitcmp')):
                for p in plain:
                    self.src |= regs(p)
            else:
                self.dst = regs(plain[0]) if plain else set()
                for p in plain[1:]:
                    self.src |= regs(p)
                if 'saveexec' in mn:
                    self.dst |= {('s', 'exec')}
        else:
            raise ValueError('unknown instruction ' + text)

    def states(self):
        if self.mn == 's_nop':
            return int(self.text.split()[1]) + 1
        return 1


def need(prod, cons):
    n = 0
    pv = {r for r in prod.dst if r[0] in 'va'}
    ps = {r for r in prod.dst if r[0] == 's'}
    is_valu_p = prod.kind in ('valu', 'trans')
    is_valu_c = cons.kind in ('valu', 'trans')
    if is_valu_p:
        if pv & cons.src:
            if cons.dpp:
                n = max(n, 2)
            if cons.mn.startswith('v_permlane'):
                n = max(n, 2)
            if cons.mn.startswith(('v_readlane', 'v_readfirstlane')):
                n = max(n, 1)
            if cons.kind == 'mfma':
                n = max(n, 2)
            if prod.kind == 'trans' and cons.kind != 'trans':
                n = max(n, 1)
        hit = ps & cons.src
        if hit:
            if cons.kind == 'vmem':
                n = max(n, 5)
            elif cons.mn.startswith(('v_readlane', 'v_writelane')):
                n = max(n, 4)
            elif is_valu_c or cons.kind == 'mfma':
                n = max(n, 2)
            elif cons.kind == 'salu':
                n = max(n, 1)
    if prod.kind == 'mfma':
        tbl_rd = {4: 8, 8: 12}
        tbl_ov = {4: 6, 8: 10}
        if cons.kind == 'mfma':
            if prod.dst & cons.ab:
                n = max(n, tbl_rd[prod.passes])
            if prod.dst & cons.srcc:
                if not (prod.dst == cons.srcc and prod.passes == cons.passes):
                    n = max(n, tbl_ov[prod.passes])
            if (prod.dst & cons.dst) and not (prod.dst == cons.srcc):
                n = max(n, tbl_rd[prod.passes])
        else:
            if prod.dst & (cons.src | cons.dst):
                n = max(n, tbl_rd[prod.passes])
            if is_valu_c and (prod.srcc & cons.dst):
                n = max(n, {4: 3, 8: 7}[prod.passes])
    if prod.kind == 'vmem' and prod.wide and (prod.storedata & cons.dst):
        n = max(n, 2)
    if prod.kind == 'salu' and ('s', 'm0') in prod.dst and cons.lds_dma:
        n = max(n, 1)
    return n


class Asm:
    def __init__(self):
        self.lines = []
        self.hist = []
        self.nnop = 0

    def raw(self, s):
        self.lines.append(s)

    def label(self, name):
        self.lines.append(name + ':')

    def __call__(self, s):
        for line in s.split('\n'):
            line = line.strip()
            if not line:
                continue
            if line.startswith(';'):
                self.lines.append('    ' + line)
                continue
            if line.endswith(':'):
                self.label(line[:-1])
                continue
            ins = Ins(line)
            dist = 0
            req = 0
            for p in reversed(self.hist):
                k = need(p, ins)
                if k > dist:
                    req = max(req, k - dist)
                dist += p.states()
                if dist >= 24:
                    break
            while req > 0:
                k = min(req, 16)
                nop = Ins(f's_nop {k-1}')
                self.lines.append(f'    s_nop {k-1}')
                self.hist.append(nop)
                self.nnop += 1
                req -= k
            self.lines.append('    ' + line)
            self.hist.append(ins)
            if len(self.hist) > 64:
                self.hist = self.hist[-40:]

    def text(self):
        return '\n'.join(self.lines) + '\n'
```

```python
import sys, math, struct
from asmlib import Asm

KN = 'recurrent_scan__compressed_kv_cla__geglu_ffn__decode_kernel'

WS_EPOCH = 0
WS_FLAGS = 0x1000
WS_DUMMY = 0x9000
WS_QA = 0x20000
WS_LSE = 0x30000
WS_CP = 0x40000
WS_PART = 0x100000
WS_STAMP = 0x400000
WS_SIZE = 0x10000000

NH, NA, NF, NC = 64, 64, 72, 36
ID_A, ID_F, ID_C = 64, 128, 200
TIMEOUT = 1 << 21


def f2u(x):
    return struct.unpack('<I', struct.pack('<f', x))[0]


class Gen:
    def __init__(self, stamps=False):
        self.a = Asm()
        self.stamps = stamps
        self.nstamp = 0
        self.uid = 0

    def lab(self, p):
        self.uid += 1
        return f'L_{p}_{self.uid}'

    def stamp(self, k):
        if self.stamps:
            self.a(f's_memrealtime s[{70+2*k}:{71+2*k}]')

    def write_stamps(self, n=14):
        if not self.stamps:
            return
        a = self.a
        skip = self.lab('nostamp')
        a('s_waitcnt lgkmcnt(0)')
        a(f's_cmp_lg_u32 s35, 0\ns_cbranch_scc1 {skip}')
        a('s_mov_b64 exec, 1')
        a(f's_lshl_b32 s64, s2, 6\ns_add_u32 s64, s64, {WS_STAMP}')
        a('v_mov_b32 v4, 0')
        for k in range(n):
            a(f'v_mov_b32 v5, s{70+2*k}')
            a(f'buffer_store_dword v5, v4, s[40:43], s64 offen offset:{4*k}')
        a.label(skip)

    def srd(self, s, lo, hi, size, add=None):
        a = self.a
        if add is None:
            a(f's_mov_b32 s{s}, s{lo}\ns_mov_b32 s{s+1}, s{hi}\ns_mov_b32 s{s+2}, {size}')
        else:
            a(f's_add_u32 s{s}, s{lo}, {add}\ns_addc_u32 s{s+1}, s{hi}, 0\ns_sub_u32 s{s+2}, {size}, {add}')
        a(f's_mov_b32 s{s+3}, 0x20000')

    def sels(self, base):
        a = self.a
        a('v_and_b32 v26, 1, v3')
        a('v_cmp_eq_u32 vcc, 1, v26')
        a('v_mov_b32 v27, 0x0c0c0100\nv_mov_b32 v28, 0x01000c0c')
        a('v_cndmask_b32 v27, v27, v28, vcc')
        a('v_mov_b32 v28, 0x0c0c0302\nv_mov_b32 v29, 0x03020c0c')
        a('v_cndmask_b32 v28, v28, v29, vcc')
        a('v_bfe_u32 v26, v3, 1, 2')
        a('v_mov_b32 v29, 0x0c0c0c0c')
        for r in range(4):
            a(f'v_cmp_eq_u32 vcc, {r}, v26')
            a(f'v_cndmask_b32 v{base+2*r}, v29, v27, vcc')
            a(f'v_cndmask_b32 v{base+2*r+1}, v29, v28, vcc')

    def afrag(self, dst, src, par, sel):
        for r in range(4):
            self.a(f'v_perm_b32 v{dst+r}, v{src}, v{src}, v{sel+2*r+par}')

    def red16(self, op, v, t=None):
        a = self.a
        for m in ('quad_perm:[1,0,3,2]', 'quad_perm:[2,3,0,1]', 'row_half_mirror', 'row_mirror'):
            a(f'{op}_dpp v{v}, v{v}, v{v} {m} row_mask:0xf bank_mask:0xf')

    def red_x16(self, op, v, t):
        a = self.a
        a(f'v_mov_b32 v{t}, v{v}')
        a(f'v_permlane16_swap_b32 v{v}, v{t}')
        a(f'{op} v{v}, v{v}, v{t}')

    def red_x32(self, op, v, t):
        a = self.a
        a(f'v_mov_b32 v{t}, v{v}')
        a(f'v_permlane32_swap_b32 v{v}, v{t}')
        a(f'{op} v{v}, v{v}, v{t}')

    def flag_regs(self):
        a = self.a
        a('s_add_u32 s60, s34, 0x9E3779B9')
        a('s_not_b32 s61, s60')
        a('s_xor_b32 s62, s60, 0x5A5AA5A5')
        a('s_mul_i32 s63, s60, 0x85EBCA6B')

    def flag_store(self, realwave, uniform):
        a = self.a
        a('v_mov_b32 v28, s60\nv_mov_b32 v29, s61\nv_mov_b32 v30, s62\nv_mov_b32 v31, s63')
        a('s_lshl_b32 s64, s2, 7')
        if uniform:
            a(f's_cmp_eq_u32 s35, {realwave}')
            a(f's_cselect_b32 s65, 0, {WS_DUMMY-WS_FLAGS}')
            a(f's_add_u32 s64, s64, s65\ns_add_u32 s64, s64, {WS_FLAGS}')
        else:
            a(f's_add_u32 s64, s64, {WS_FLAGS}')
        a('v_mov_b32 v27, 0')
        a('s_mov_b64 exec, 1')
        a('buffer_store_dwordx4 v[28:31], v27, s[40:43], s64 offen sc1')
        a('s_mov_b64 exec, -1')

    def poll_flags(self, groups, vt=24):
        a = self.a
        lp, done = self.lab('fl'), self.lab('fld')
        a(f's_mov_b32 s66, {TIMEOUT}')
        a.label(lp)
        a('s_mov_b64 s[68:69], 0')
        for first, cnt in groups:
            a(f'v_min_u32 v{vt}, {cnt-1}, v1')
            a(f'v_lshlrev_b32 v{vt}, 7, v{vt}')
            a(f's_mov_b32 s64, {WS_FLAGS + first*128}')
            a(f'buffer_load_dwordx4 v[{vt+4}:{vt+7}], v{vt}, s[40:43], s64 offen sc1')
            a('s_waitcnt vmcnt(0)')
            a(f'v_xor_b32 v{vt+4}, s60, v{vt+4}\nv_xor_b32 v{vt+5}, s61, v{vt+5}')
            a(f'v_xor_b32 v{vt+6}, s62, v{vt+6}\nv_xor_b32 v{vt+7}, s63, v{vt+7}')
            a(f'v_or3_b32 v{vt+4}, v{vt+4}, v{vt+5}, v{vt+6}')
            a(f'v_or_b32 v{vt+4}, v{vt+4}, v{vt+7}')
            a(f'v_cmp_ne_u32 vcc, 0, v{vt+4}')
            a('s_or_b64 s[68:69], s[68:69], vcc')
        a('s_cmp_eq_u64 s[68:69], 0')
        a(f's_cbranch_scc1 {done}')
        a('s_sleep 2')
        a('s_sub_u32 s66, s66, 1\ns_cmp_lg_u32 s66, 0')
        a(f's_cbranch_scc1 {lp}')
        a.label(done)

    def poll_data(self, issue, dwords, vt):
        a = self.a
        lp, done = self.lab('pd'), self.lab('pdd')
        a(f's_mov_b32 s66, {TIMEOUT}')
        a.label(lp)
        issue()
        a('s_waitcnt vmcnt(0)')
        d = list(dwords)
        if len(d) >= 3:
            a(f'v_max3_u32 v{vt}, v{d[0]}, v{d[1]}, v{d[2]}')
            d = d[3:]
        else:
            a(f'v_mov_b32 v{vt}, v{d[0]}')
            d = d[1:]
        while len(d) >= 2:
            a(f'v_max3_u32 v{vt}, v{vt}, v{d[0]}, v{d[1]}')
            d = d[2:]
        if d:
            a(f'v_max_u32 v{vt}, v{vt}, v{d[0]}')
        a(f'v_cmp_eq_u32 vcc, -1, v{vt}')
        a(f's_cbranch_vccz {done}')
        a('s_sub_u32 s66, s66, 1\ns_cmp_lg_u32 s66, 0')
        a(f's_cbranch_scc1 {lp}')
        a.label(done)

    def clear_cp(self, rowreg):
        a = self.a
        a('v_lshlrev_b32 v27, 4, v1')
        for i in range(4):
            a(f'buffer_store_dwordx4 v[28:31], v27, s[40:43], {rowreg} offen offset:{i*1024} sc1')
        a('v_and_b32 v27, 0x1ff, v27')
        a('v_add_u32 v27, 4096, v27')
        a(f'buffer_store_dwordx4 v[28:31], v27, s[40:43], {rowreg} offen sc1')

    def ln_loads(self, rot):
        a = self.a
        a('v_lshrrev_b32 v4, 5, v1\nv_mul_u32_u24 v4, 1152, v4')
        a('v_and_b32 v5, 31, v1\nv_mad_u32_u24 v4, v5, 36, v4')
        a('buffer_load_dwordx4 v[8:11], v4, s[44:47], 0 offen')
        a('buffer_load_dwordx4 v[12:15], v4, s[44:47], 0 offen offset:16')
        a('buffer_load_dword v16, v4, s[44:47], 0 offen offset:32')
        a('v_lshrrev_b32 v5, 3, v3\nv_mul_u32_u24 v5, 1152, v5')
        a('s_lshl_b32 s64, s35, 2\nv_add_u32 v6, s64, v2\nv_mad_u32_u24 v5, v6, 36, v5')
        if rot is None:
            for k in range(9):
                a(f'buffer_load_dword v{17+k}, v5, s[44:47], 0 offen offset:{4*k}')
        else:
            a(f's_mov_b32 s64, {rot}')
            for k in range(9):
                a(f'buffer_load_dword v{17+k}, v5, s[44:47], s64 offen')
                if k < 8:
                    a('s_add_u32 s64, s64, 4\ns_cmp_eq_u32 s64, 36\ns_cselect_b32 s64, 0, s64')
        return 12

    def ln_compute(self, tmp, afr, sel):
        a = self.a
        for k in range(9):
            a(f'v_lshlrev_b32 v{tmp+2*k}, 16, v{8+k}')
            a(f'v_and_b32 v{tmp+2*k+1}, 0xffff0000, v{8+k}')
        S = tmp + 18
        a(f'v_pk_add_f32 v[{S}:{S+1}], v[{tmp}:{tmp+1}], v[{tmp+2}:{tmp+3}]')
        for k in range(2, 9):
            a(f'v_pk_add_f32 v[{S}:{S+1}], v[{S}:{S+1}], v[{tmp+2*k}:{tmp+2*k+1}]')
        a(f'v_add_f32 v{S}, v{S}, v{S+1}')
        self.red16('v_add_f32', S)
        self.red_x16('v_add_f32', S, S + 1)
        a(f'v_mul_f32 v{S}, {hex(f2u(1.0/576))}, v{S}')
        a(f'v_mov_b32 v{S+2}, 0')
        for k in range(18):
            a(f'v_sub_f32 v{tmp+k}, v{tmp+k}, v{S}')
            a(f'v_fmac_f32 v{S+2}, v{tmp+k}, v{tmp+k}')
        self.red16('v_add_f32', S + 2)
        self.red_x16('v_add_f32', S + 2, S + 1)
        a(f'v_mul_f32 v{S+2}, {hex(f2u(1.0/576))}, v{S+2}')
        a(f'v_cvt_pk_bf16_f32 v{S+1}, v{S}, v{S+2}')
        a(f'v_lshlrev_b32 v{S}, 16, v{S+1}')
        a(f'v_and_b32 v{S+2}, 0xffff0000, v{S+1}')
        a(f'v_add_f32 v{S+2}, {hex(f2u(1e-5))}, v{S+2}')
        a(f'v_cvt_pk_bf16_f32 v{S+2}, v{S+2}, v{S+2}')
        a(f'v_and_b32 v{S+2}, 0xffff0000, v{S+2}')
        a(f'v_sqrt_f32 v{S+2}, v{S+2}')
        a(f'v_cvt_pk_bf16_f32 v{S+2}, v{S+2}, v{S+2}')
        a(f'v_and_b32 v{S+2}, 0xffff0000, v{S+2}')
        a(f'v_rcp_f32 v{S+2}, v{S+2}')
        a(f'v_readlane_b32 s64, v{S}, 0\nv_readlane_b32 s65, v{S}, 32')
        a(f'v_readlane_b32 s66, v{S+2}, 0\nv_readlane_b32 s67, v{S+2}, 32')
        a('v_cmp_lt_u32 vcc, 7, v3')
        a(f'v_mov_b32 v{S}, s64\nv_mov_b32 v{S+1}, s65\nv_cndmask_b32 v{S}, v{S}, v{S+1}, vcc')
        a(f'v_mov_b32 v{S+2}, s66\nv_mov_b32 v{S+1}, s67\nv_cndmask_b32 v{S+2}, v{S+2}, v{S+1}, vcc')
        for k in range(9):
            lo, hi = tmp + 2 * k, tmp + 2 * k + 1
            a(f'v_lshlrev_b32 v{lo}, 16, v{17+k}')
            a(f'v_and_b32 v{hi}, 0xffff0000, v{17+k}')
            a(f'v_sub_f32 v{lo}, v{lo}, v{S}\nv_sub_f32 v{hi}, v{hi}, v{S}')
            a(f'v_cvt_pk_bf16_f32 v{17+k}, v{lo}, v{hi}')
            a(f'v_lshlrev_b32 v{lo}, 16, v{17+k}')
            a(f'v_and_b32 v{hi}, 0xffff0000, v{17+k}')
            a(f'v_mul_f32 v{lo}, v{lo}, v{S+2}\nv_mul_f32 v{hi}, v{hi}, v{S+2}')
            a(f'v_cvt_pk_bf16_f32 v{17+k}, v{lo}, v{hi}')
        for k in range(18):
            self.afrag(afr + 4 * k, 17 + (k >> 1), k & 1, sel)

    def final_reduce_store(self, acc, rowreg, R3):
        a = self.a
        a('v_lshrrev_b32 v4, 5, v1\nv_mul_u32_u24 v4, 2304, v4')
        a('v_lshl_add_u32 v4, v3, 5, v4')
        a('v_and_b32 v5, 1, v2\nv_lshl_add_u32 v4, v5, 4, v4')
        a(f's_mul_i32 s64, s35, 4608\ns_add_u32 s64, s64, {R3}\nv_add_u32 v4, s64, v4')
        for cb in range(4):
            a(f'ds_write_b128 v4, v[{acc+4*cb}:{acc+4*cb+3}] offset:{cb*512}')
        a('s_mov_b32 exec_lo, 0x00ff00ff\ns_mov_b32 exec_hi, 0x00ff00ff')
        a(f'ds_write_b128 v4, v[{acc+16}:{acc+19}] offset:2048')
        a('s_mov_b64 exec, -1')
        a('s_waitcnt lgkmcnt(0)\ns_barrier')
        skip = self.lab('fr')
        a(f's_cmp_gt_u32 s35, 4\ns_cbranch_scc1 {skip}')
        a('v_cmp_gt_u32 vcc, 288, v0\ns_and_b64 exec, exec, vcc')
        a('v_lshlrev_b32 v4, 4, v0')
        for w in range(8):
            a(f'ds_read_b128 v[{32+4*w}:{35+4*w}], v4 offset:{R3+w*4608}')
        for w in range(1, 8):
            a(f's_waitcnt lgkmcnt({7-w})')
            a(f'v_pk_add_f32 v[32:33], v[32:33], v[{32+4*w}:{33+4*w}]')
            a(f'v_pk_add_f32 v[34:35], v[34:35], v[{34+4*w}:{35+4*w}]')
        for r in range(4):
            a(f'v_min_u32 v{32+r}, -2, v{32+r}')
        a(f'buffer_store_dwordx4 v[32:35], v4, s[40:43], {rowreg} offen sc1')
        a('s_mov_b64 exec, -1')
        a.label(skip)

    def prologue(self):
        a = self.a
        self.stamp(0)
        a('s_cmp_ge_u32 s2, 256\ns_cbranch_scc1 L_end')
        a('s_load_dwordx16 s[8:23], s[0:1], 0')
        a('s_load_dwordx8 s[24:31], s[0:1], 64')
        a('s_load_dwordx2 s[32:33], s[0:1], 96')
        a('v_lshrrev_b32 v2, 6, v0')
        a('v_and_b32 v1, 63, v0')
        a('v_readfirstlane_b32 s35, v2')
        a('v_lshrrev_b32 v2, 4, v1\nv_and_b32 v3, 15, v1')
        a('s_and_b32 s36, s2, 7\ns_lshr_b32 s37, s2, 3')
        a('v_mov_b32 v28, -1\nv_mov_b32 v29, -1\nv_mov_b32 v30, -1\nv_mov_b32 v31, -1')
        a('s_waitcnt lgkmcnt(0)')
        a(f's_load_dword s34, s[32:33], {WS_EPOCH}')
        self.srd(40, 32, 33, WS_SIZE)
        a('s_cmp_ge_u32 s37, 25\ns_cbranch_scc1 L_roleP')
        a('s_cmp_ge_u32 s37, 16\ns_cbranch_scc1 L_roleF')
        a('s_cmp_ge_u32 s37, 8\ns_cbranch_scc1 L_roleA')

    def role_H(self):
        a = self.a
        W, AF, UK, SEL, ACC = 32, 104, 176, 208, 216
        a('s_lshr_b32 s38, s37, 1\ns_lshl_b32 s64, s36, 2\ns_add_u32 s38, s38, s64\ns_and_b32 s39, s37, 1')
        a('s_lshl_b32 s56, s38, 8')
        self.srd(44, 8, 9, 2304)
        self.srd(48, 12, 13, 576 * 8192, 's56')
        self.srd(52, 14, 15, 512 * 8192, 's56')
        a(f's_mul_i32 s57, s2, 4608\ns_add_u32 s57, s57, {WS_CP}')
        a(f's_lshl_b32 s58, s38, 10\ns_lshl_b32 s64, s39, 9\ns_add_u32 s58, s58, s64')
        sk = self.lab('hclr')
        a(f's_cmp_lg_u32 s35, 7\ns_cbranch_scc1 {sk}')
        a('v_lshrrev_b32 v4, 5, v1\nv_lshlrev_b32 v4, 15, v4\nv_and_b32 v5, 31, v1\nv_lshl_add_u32 v4, v5, 4, v4')
        a(f's_add_u32 s64, s58, {WS_QA}')
        a('buffer_store_dwordx4 v[28:31], v4, s[40:43], s64 offen sc1')
        self.clear_cp('s57')
        a.label(sk)
        a('s_mul_i32 s59, s39, 20')
        self.ln_loads('s59')
        a('s_mul_i32 s64, s35, 72\nv_mul_u32_u24 v6, 18, v2\nv_add_u32 v6, s64, v6\nv_lshlrev_b32 v6, 13, v6')
        a('v_lshl_add_u32 v6, v3, 4, v6')
        a(f's_mul_i32 s64, s39, {10*8192}')
        for k in range(18):
            a(f'buffer_load_dwordx4 v[{W+4*k}:{W+4*k+3}], v6, s[48:51], s64 offen nt')
            if k < 17:
                a(f's_add_u32 s64, s64, 8192\ns_cmp_eq_u32 s64, {18*8192}\ns_cselect_b32 s64, 0, s64')
        a('s_lshl_b32 s64, s39, 8\ns_lshl_b32 s65, s35, 5\ns_add_u32 s67, s64, s65')
        a('v_add_u32 v7, s67, v3\nv_lshlrev_b32 v7, 13, v7\nv_lshl_add_u32 v7, v2, 4, v7')
        a('s_mov_b32 s64, 131072')
        for t in range(2):
            for s in range(4):
                so = '0' if t == 0 else 's64'
                a(f'buffer_load_dwordx4 v[{UK+16*t+4*s}:{UK+16*t+4*s+3}], v7, s[52:55], {so} offen offset:{64*s} nt')
        self.stamp(1)
        a('s_mov_b32 s59, s67')
        self.sels(SEL)
        a('s_waitcnt vmcnt(26) lgkmcnt(0)')
        self.flag_regs()
        self.flag_store(7, True)
        self.ln_compute(220, AF, SEL)
        self.stamp(2)
        for k in range(18):
            a(f's_waitcnt vmcnt({26-k})')
            c = '0' if k == 0 else f'v[{ACC}:{ACC+3}]'
            a(f'v_mfma_f32_16x16x32_bf16 v[{ACC}:{ACC+3}], v[{AF+4*k}:{AF+4*k+3}], v[{W+4*k}:{W+4*k+3}], {c}')
        self.stamp(3)
        a('v_lshrrev_b32 v4, 5, v1\nv_lshlrev_b32 v4, 3, v4\nv_add_u32 v4, s35, v4\nv_mul_u32_u24 v4, 288, v4')
        a('v_lshl_add_u32 v4, v3, 4, v4\nv_and_b32 v5, 1, v2\nv_lshl_add_u32 v4, v5, 3, v4')
        a('v_mul_u32_u24 v5, 288, v3\nv_lshl_add_u32 v5, v2, 4, v5')
        a(f'v_cvt_pk_bf16_f32 v8, v{ACC}, v{ACC+1}\nv_cvt_pk_bf16_f32 v9, v{ACC+2}, v{ACC+3}')
        a('ds_write_b64 v4, v[8:9]')
        a('s_waitcnt lgkmcnt(0)\ns_barrier')
        for s in range(4):
            a(f'ds_read_b128 v[{8+4*s}:{11+4*s}], v5 offset:{64*s}')
        a('v_lshrrev_b32 v4, 3, v3\nv_lshlrev_b32 v4, 15, v4\nv_and_b32 v6, 7, v3\nv_lshl_add_u32 v4, v6, 5, v4')
        a('v_lshl_add_u32 v4, v2, 3, v4')
        a(f's_lshl_b32 s64, s38, 10\ns_lshl_b32 s65, s59, 1\ns_add_u32 s64, s64, s65\ns_add_u32 s64, s64, {WS_QA}')
        a('s_waitcnt vmcnt(1)')
        D = 220
        for s in range(4):
            a(f's_waitcnt lgkmcnt({3-s})')
            for t in range(2):
                c = '0' if s == 0 else f'v[{D+4*t}:{D+4*t+3}]'
                a(f'v_mfma_f32_16x16x32_bf16 v[{D+4*t}:{D+4*t+3}], v[{UK+16*t+4*s}:{UK+16*t+4*s+3}], v[{8+4*s}:{11+4*s}], {c}')
        a('v_cmp_eq_u32 s[68:69], 1, v6\nv_cmp_gt_u32 vcc, 2, v6')
        for m in ('quad_perm:[1,0,3,2]', 'quad_perm:[2,3,0,1]', 'row_half_mirror'):
            for r in range(8):
                a(f'v_add_f32_dpp v{D+r}, v{D+r}, v{D+r} {m} row_mask:0xf bank_mask:0xf')
        for r in range(4):
            a(f'v_cndmask_b32 v{D+r}, v{D+r}, v{D+4+r}, s[68:69]')
        sc = hex(f2u(128 ** -0.5 * math.log2(math.e)))
        for r in range(4):
            a(f'v_mul_f32 v{D+r}, {sc}, v{D+r}')
        a(f'v_cvt_pk_bf16_f32 v8, v{D}, v{D+1}\nv_cvt_pk_bf16_f32 v9, v{D+2}, v{D+3}')
        a('v_min_u32 v8, -2, v8\nv_min_u32 v9, -2, v9')
        a('s_and_b64 exec, exec, vcc')
        a('buffer_store_dwordx2 v[8:9], v4, s[40:43], s64 offen sc1')
        a('s_mov_b64 exec, -1')
        self.stamp(4)
        UV, WO, G = 32, 64, 144
        self.srd(48, 16, 17, 512 * 8192, 's56')
        a('s_mul_i32 s64, s38, 147456')
        a('s_add_u32 s52, s18, s64\ns_addc_u32 s53, s19, 0\ns_mov_b32 s54, 147456\ns_mov_b32 s55, 0x20000')
        a('v_lshlrev_b32 v6, 3, v2\nv_add_u32 v6, s59, v6\nv_lshlrev_b32 v6, 13, v6\nv_lshl_add_u32 v6, v3, 4, v6')
        a('s_mov_b32 s64, 0')
        for s in range(8):
            a(f'buffer_load_dwordx4 v[{UV+4*s}:{UV+4*s+3}], v6, s[48:51], s64 offen nt')
            if s < 7:
                a('s_add_u32 s64, s64, 8192')
        a('s_lshl_b32 s64, s35, 4\nv_lshl_add_u32 v7, v2, 2, s64\nv_mul_u32_u24 v7, 1152, v7\nv_lshl_add_u32 v7, v3, 4, v7')
        for s in range(4):
            a(f's_mov_b32 s64, {s*1152}')
            for cb in range(4):
                a(f'buffer_load_dwordx4 v[{WO+20*s+4*cb}:{WO+20*s+4*cb+3}], v7, s[52:55], s64 offen offset:{256*cb} nt')
        a('s_mov_b32 exec_lo, 0x00ff00ff\ns_mov_b32 exec_hi, 0x00ff00ff')
        for s in range(4):
            a(f's_mov_b32 s64, {s*1152}')
            a(f'buffer_load_dwordx4 v[{WO+20*s+16}:{WO+20*s+19}], v7, s[52:55], s64 offen offset:1024 nt')
        a('s_mov_b64 exec, -1')
        a('s_lshr_b32 s64, s35, 2\ns_lshl_b32 s64, s64, 5')
        a('v_and_b32 v4, 31, v1\nv_add_u32 v4, s64, v4\nv_lshlrev_b32 v4, 7, v4')
        a(f's_lshl_b32 s65, s38, 2\ns_add_u32 s56, s65, {WS_LSE}')
        a('s_and_b32 s65, s35, 3\ns_lshl_b32 s65, s65, 3')
        a('v_add_u32 v10, s65, v2\nv_lshlrev_b32 v10, 2, v10\nv_add_u32 v11, 16, v10')
        a('s_add_u32 s64, s64, s65')
        a('v_add_u32 v5, s64, v2\nv_lshlrev_b32 v5, 15, v5\nv_lshl_add_u32 v5, v3, 4, v5')
        a(f's_add_u32 s58, s58, {WS_PART}\ns_add_u32 s59, s58, 131072')
        self.poll_flags([(ID_A, 64)])
        self.stamp(5)

        def issue():
            a('buffer_load_dword v8, v4, s[40:43], s56 offen sc1')
            for i in range(4):
                so = 's58' if i < 2 else 's59'
                a(f'buffer_load_dwordx4 v[{G+4*i}:{G+4*i+3}], v5, s[40:43], {so} offen offset:{256*(i&1)} sc1')
        self.poll_data(issue, [8] + list(range(G, G + 16)), 9)
        self.stamp(6)
        a('v_mov_b32 v9, v8')
        self.red16('v_max_f32', 9)
        self.red_x16('v_max_f32', 9, 12)
        a('v_sub_f32 v8, v8, v9\nv_exp_f32 v8, v8')
        a('v_mov_b32 v9, v8')
        self.red16('v_add_f32', 9)
        self.red_x16('v_add_f32', 9, 12)
        a('v_rcp_f32 v9, v9\nv_mul_f32 v8, v8, v9')
        a('ds_bpermute_b32 v12, v10, v8\nds_bpermute_b32 v13, v11, v8')
        a('v_cmp_lt_u32 vcc, 7, v3')
        R1, R2, R3 = 0, 8448, 17664
        a('v_lshrrev_b32 v6, 5, v1\nv_lshl_add_u32 v6, v6, 4, v3\nv_lshlrev_b32 v6, 5, v6')
        a('v_and_b32 v7, 1, v2\nv_lshl_add_u32 v6, v7, 4, v6')
        a(f's_mul_i32 s64, s35, 1040\nv_add_u32 v6, s64, v6')
        a('v_lshrrev_b32 v7, 3, v3\nv_mul_u32_u24 v7, 4160, v7\nv_lshl_add_u32 v7, v2, 5, v7')
        a('s_lshl_b32 s64, s35, 7\nv_add_u32 v7, s64, v7')
        a('s_waitcnt lgkmcnt(0)')
        for q in range(2):
            a(f'v_cvt_pk_bf16_f32 v14, v{12+q}, v{12+q}')
            a(f'v_and_b32 v15, 0xffff0000, v14')
            a(f'v_sub_f32 v15, v{12+q}, v15')
            a(f'v_cvt_pk_bf16_f32 v15, v15, v15')
            a(f'v_cndmask_b32 v14, v14, v15, vcc')
            self.afrag(16 + 4 * q, 14, 0, SEL)
        C0 = 160
        for q in range(2):
            for cb in range(2):
                c = '0' if q == 0 else f'v[{C0+4*cb}:{C0+4*cb+3}]'
                a(f'v_mfma_f32_16x16x32_bf16 v[{C0+4*cb}:{C0+4*cb+3}], v[{16+4*q}:{19+4*q}], v[{G+8*q+4*cb}:{G+8*q+4*cb+3}], {c}')
        for r in range(4):
            a(f'v_permlane32_swap_b32 v{C0+r}, v{C0+4+r}')
        for r in range(4):
            a(f'v_add_f32 v{C0+r}, v{C0+r}, v{C0+4+r}')
        a(f'ds_write_b128 v6, v[{C0}:{C0+3}] offset:{R1}')
        a('s_waitcnt lgkmcnt(0)\ns_barrier')
        T = 144
        for wq in range(4):
            for hf in range(2):
                a(f'ds_read_b128 v[{T+8*wq+4*hf}:{T+8*wq+4*hf+3}], v7 offset:{R1+wq*1040+16*hf}')
        a('v_lshrrev_b32 v6, 5, v1\nv_mul_u32_u24 v6, 576, v6\nv_lshl_add_u32 v6, v3, 5, v6')
        a('v_and_b32 v8, 1, v2\nv_lshl_add_u32 v6, v8, 4, v6')
        a('s_mul_i32 s64, s35, 1152\nv_add_u32 v6, s64, v6')
        a('v_lshrrev_b32 v7, 3, v3\nv_mul_u32_u24 v7, 576, v7\nv_lshl_add_u32 v7, v2, 4, v7')
        a('s_lshl_b32 s64, s35, 6\nv_add_u32 v7, s64, v7')
        for wq in range(1, 4):
            a(f's_waitcnt lgkmcnt({6-2*wq})')
            for p in range(4):
                a(f'v_pk_add_f32 v[{T+2*p}:{T+2*p+1}], v[{T+2*p}:{T+2*p+1}], v[{T+8*wq+2*p}:{T+8*wq+2*p+1}]')
        for p in range(4):
            a(f'v_cvt_pk_bf16_f32 v{8+p}, v{T+2*p}, v{T+2*p+1}')
        for s in range(8):
            f = 152 + 4 * s
            self.afrag(f, 8 + (s >> 1), s & 1, SEL)
        for s in range(8):
            f = 152 + 4 * s
            c = '0' if s == 0 else f'v[{ACC}:{ACC+3}]'
            a(f'v_mfma_f32_16x16x32_bf16 v[{ACC}:{ACC+3}], v[{f}:{f+3}], v[{UV+4*s}:{UV+4*s+3}], {c}')
        a(f'ds_write_b128 v6, v[{ACC}:{ACC+3}] offset:{R2}')
        a('s_waitcnt lgkmcnt(0)\ns_barrier')
        for w in range(8):
            a(f'ds_read_b128 v[{T+4*w}:{T+4*w+3}], v7 offset:{R2+w*1152}')
        for w in range(1, 8):
            a(f's_waitcnt lgkmcnt({7-w})')
            for p in range(2):
                a(f'v_pk_add_f32 v[{T+2*p}:{T+2*p+1}], v[{T+2*p}:{T+2*p+1}], v[{T+4*w+2*p}:{T+4*w+2*p+1}]')
        for p in range(2):
            a(f'v_cvt_pk_bf16_f32 v{8+p}, v{T+2*p}, v{T+2*p+1}')
        O = 220
        for s in range(4):
            f = 152 + 4 * s
            self.afrag(f, 8 + (s >> 1), s & 1, SEL)
        for s in range(4):
            f = 152 + 4 * s
            for cb in range(5):
                c = '0' if s == 0 else f'v[{O+4*cb}:{O+4*cb+3}]'
                a(f'v_mfma_f32_16x16x32_bf16 v[{O+4*cb}:{O+4*cb+3}], v[{f}:{f+3}], v[{WO+20*s+4*cb}:{WO+20*s+4*cb+3}], {c}')
        self.stamp(7)
        self.final_reduce_store(O, 's57', R3)
        self.stamp(8)
        self.write_stamps()
        a('s_endpgm')

    def role_A(self):
        a = self.a
        SO, PV, G, BF, AS, AP = 32, 96, 160, 176, 208, 216
        a.label('L_roleA')
        a('s_lshl_b32 s38, s36, 3\ns_add_u32 s38, s38, s37\ns_sub_u32 s38, s38, 8')
        a('s_lshl_b32 s56, s38, 17')
        self.srd(44, 10, 11, 2 * 4096 * 1024, 's56')
        a(f's_lshl_b32 s57, s38, 15\ns_add_u32 s57, s57, {WS_PART}')
        a(f's_lshl_b32 s58, s38, 7\ns_add_u32 s58, s58, {WS_LSE}')
        a('v_lshlrev_b32 v4, 4, v0')
        a('s_mov_b32 s64, s57')
        for i in range(4):
            a('buffer_store_dwordx4 v[28:31], v4, s[40:43], s64 offen sc1')
            if i < 3:
                a('s_add_u32 s64, s64, 8192')
        a('v_and_b32 v5, 7, v1\nv_lshlrev_b32 v5, 4, v5')
        a('buffer_store_dwordx4 v[28:31], v5, s[40:43], s58 offen sc1')
        a('s_lshl_b32 s64, s35, 14')
        a('v_lshlrev_b32 v4, 4, v1')
        for k in range(16):
            f = ((k & 3) << 2) | (k >> 2)
            a(f'v_xor_b32 v5, {f*16}, v4')
            a('s_mov_b32 m0, s64')
            a('buffer_load_dwordx4 v5, s[44:47], s64 offen nt lds')
            if k < 15:
                a('s_add_u32 s64, s64, 1024')
        self.stamp(1)
        a('v_and_b32 v5, 3, v3\nv_lshlrev_b32 v5, 2, v5\nv_lshrrev_b32 v6, 2, v3\nv_or_b32 v5, v5, v6')
        a('s_lshl_b32 s64, s35, 4\nv_add_u32 v6, s64, v3\nv_lshlrev_b32 v6, 10, v6\nv_lshl_add_u32 v6, v2, 8, v6')
        a('v_lshl_add_u32 v6, v5, 4, v6')
        a('s_waitcnt vmcnt(0) lgkmcnt(0)')
        self.flag_regs()
        for s in range(16):
            a(f'v_xor_b32 v7, {s*16}, v6')
            a(f'ds_read_b128 v[{SO+4*s}:{SO+4*s+3}], v7')
        a('v_lshrrev_b32 v8, 2, v3\nv_lshl_add_u32 v9, v2, 3, v8\nv_lshlrev_b32 v9, 10, v9')
        a('v_and_b32 v10, 1, v2\nv_lshlrev_b32 v10, 1, v10\nv_lshl_or_b32 v10, v8, 2, v10')
        a('v_bfe_u32 v11, v3, 1, 1\ns_lshl_b32 s64, s35, 3\nv_add_u32 v11, s64, v11')
        a('v_xor_b32 v10, v10, v11\nv_lshl_add_u32 v9, v10, 4, v9')
        a('v_and_b32 v10, 1, v3\nv_lshl_add_u32 v9, v10, 3, v9')
        a('v_xor_b32 v10, 16, v9\nv_add_u32 v10, 4096, v10')
        a('s_barrier')
        self.stamp(2)
        sk = self.lab('aflag')
        a(f's_cmp_lg_u32 s35, 0\ns_cbranch_scc1 {sk}')
        self.flag_store(0, False)
        a.label(sk)
        for ct in range(4):
            for hh in range(2):
                a(f'v_xor_b32 v11, {ct*32}, v{9+hh}')
                a(f'v_add_u32 v12, 65536, v11')
                for t in range(4):
                    r = PV + 16 * ct + 4 * t + 2 * hh
                    a(f'ds_read_b64_tr_b16 v[{r}:{r+1}], v{11 + (t>>1)} offset:{(t&1)*32768}')
        sk = self.lab('apoll')
        a(f's_cmp_lg_u32 s35, 0\ns_cbranch_scc1 {sk}')
        self.poll_flags([(0, 64)])
        a.label(sk)
        a(f's_lshr_b32 s64, s38, 5\ns_lshl_b32 s64, s64, 15\ns_add_u32 s59, s64, {WS_QA}')
        a('v_lshlrev_b32 v4, 4, v0')
        a('s_add_u32 s52, s59, 8192\ns_add_u32 s53, s59, 16384\ns_add_u32 s54, s59, 24576')
        a('v_xor_b32 v5, s35, v1\nv_lshlrev_b32 v5, 4, v5\ns_lshl_b32 s64, s35, 10\nv_add_u32 v5, s64, v5')
        a('v_xor_b32 v6, 128, v5')
        a('v_lshlrev_b32 v7, 10, v3\nv_lshl_add_u32 v7, v2, 8, v7\nv_lshl_add_u32 v7, v3, 4, v7')
        a('s_waitcnt lgkmcnt(0)\ns_barrier')
        self.stamp(3)

        def issue():
            for i, so in enumerate(('s59', 's52', 's53', 's54')):
                a(f'buffer_load_dwordx4 v[{G+4*i}:{G+4*i+3}], v4, s[40:43], {so} offen sc1')
        self.poll_data(issue, list(range(G, G + 16)), 8)
        self.stamp(4)
        for i in range(4):
            a(f'ds_write_b128 v{5 + (i&1)}, v[{G+4*i}:{G+4*i+3}] offset:{i*8192}')
        a('s_waitcnt lgkmcnt(0)\ns_barrier')
        MX, LS, PB = 32768, 33792, 34816
        seq = [(s, hg) for s in range(16) for hg in range(2)]
        NB = 8

        def rd(j):
            s, hg = seq[j]
            if hg == 0:
                a(f'v_xor_b32 v{8 + (s&1)}, {s*16}, v7')
            a(f'ds_read_b128 v[{BF+4*(j%NB)}:{BF+4*(j%NB)+3}], v{8 + (s&1)} offset:{hg*16384}')
        for j in range(NB - 1):
            rd(j)
        for j in range(32):
            if j + NB - 1 < 32:
                rd(j + NB - 1)
                a(f's_waitcnt lgkmcnt({NB-1})')
            else:
                a(f's_waitcnt lgkmcnt({31-j})')
            s, hg = seq[j]
            c = '0' if s == 0 else f'v[{AS+4*hg}:{AS+4*hg+3}]'
            a(f'v_mfma_f32_16x16x32_bf16 v[{AS+4*hg}:{AS+4*hg+3}], v[{SO+4*s}:{SO+4*s+3}], v[{BF+4*(j%NB)}:{BF+4*(j%NB)+3}], {c}')
        self.stamp(5)
        a('v_and_b32 v4, 31, v1\nv_lshlrev_b32 v4, 5, v4\ns_lshl_b32 s64, s35, 2\nv_add_u32 v4, s64, v4')
        a('v_lshlrev_b32 v5, 5, v3')
        a('v_and_b32 v6, 1, v2\nv_cmp_eq_u32 s[68:69], 1, v6')
        a('v_mul_u32_u24 v6, 288, v3\ns_lshl_b32 s64, s35, 5\nv_lshl_add_u32 v7, v2, 3, s64\nv_add_u32 v7, v7, v6')
        a('v_lshl_add_u32 v6, v2, 4, v6')
        for hg in range(2):
            a(f'v_max3_f32 v{10+hg}, v{AS+4*hg}, v{AS+4*hg+1}, v{AS+4*hg+2}')
            a(f'v_max_f32 v{10+hg}, v{10+hg}, v{AS+4*hg+3}')
        for hg in range(2):
            self.red_x32('v_max_f32', 10 + hg, 12 + hg)
        a('v_permlane16_swap_b32 v10, v11')
        a('v_max_f32 v10, v10, v11')
        a(f'ds_write_b32 v4, v10 offset:{MX}')
        a('s_waitcnt lgkmcnt(0)\ns_barrier')
        for hg in range(2):
            for hf in range(2):
                a(f'ds_read_b128 v[{12+8*hg+4*hf}:{15+8*hg+4*hf}], v5 offset:{MX+512*hg+16*hf}')
        for hg in range(2):
            b = 12 + 8 * hg
            a(f's_waitcnt lgkmcnt({2-2*hg})')
            a(f'v_max3_f32 v{b}, v{b}, v{b+1}, v{b+2}\nv_max3_f32 v{b+3}, v{b+3}, v{b+4}, v{b+5}')
            a(f'v_max3_f32 v{b}, v{b}, v{b+6}, v{b+7}\nv_max_f32 v{248+hg}, v{b}, v{b+3}')
            for r in range(4):
                a(f'v_sub_f32 v{AS+4*hg+r}, v{AS+4*hg+r}, v{248+hg}')
            for r in range(4):
                a(f'v_exp_f32 v{AS+4*hg+r}, v{AS+4*hg+r}')
            a(f'v_cvt_pk_bf16_f32 v{b}, v{AS+4*hg}, v{AS+4*hg+1}\nv_cvt_pk_bf16_f32 v{b+1}, v{AS+4*hg+2}, v{AS+4*hg+3}')
            a(f'ds_write_b64 v7, v[{b}:{b+1}] offset:{PB+hg*16*288}')
            a(f'v_add_f32 v{10+hg}, v{AS+4*hg}, v{AS+4*hg+1}\nv_add_f32 v{b+2}, v{AS+4*hg+2}, v{AS+4*hg+3}')
            a(f'v_add_f32 v{10+hg}, v{10+hg}, v{b+2}')
        for hg in range(2):
            self.red_x32('v_add_f32', 10 + hg, 12 + hg)
        a('v_permlane16_swap_b32 v10, v11')
        a('v_add_f32 v10, v10, v11')
        a(f'ds_write_b32 v4, v10 offset:{LS}')
        a('s_waitcnt lgkmcnt(0)\ns_barrier')
        self.stamp(6)
        for hg in range(2):
            for t in range(4):
                r = BF + 16 * hg + 4 * t
                a(f'ds_read_b128 v[{r}:{r+3}], v6 offset:{PB+hg*16*288+64*t}')
        for hg in range(2):
            for hf in range(2):
                a(f'ds_read_b128 v[{12+8*hg+4*hf}:{15+8*hg+4*hf}], v5 offset:{LS+512*hg+16*hf}')
        a('v_lshlrev_b32 v4, 10, v3\nv_and_b32 v7, 1, v2\nv_lshl_add_u32 v4, v7, 5, v4')
        a('v_lshrrev_b32 v7, 1, v2\nv_lshl_add_u32 v4, v7, 4, v4\ns_lshl_b32 s64, s35, 7\nv_add_u32 v4, s64, v4')
        a('s_add_u32 s59, s57, 16384')
        for hg in range(2):
            for t in range(4):
                a(f's_waitcnt lgkmcnt({11-4*hg-t})')
                for ct in range(4):
                    d = AP + 16 * hg + 4 * ct
                    c = '0' if t == 0 else f'v[{d}:{d+3}]'
                    a(f'v_mfma_f32_16x16x32_bf16 v[{d}:{d+3}], v[{PV+16*ct+4*t}:{PV+16*ct+4*t+3}], v[{BF+16*hg+4*t}:{BF+16*hg+4*t+3}], {c}')
            if hg == 0:
                a('s_waitcnt lgkmcnt(0)')
                for h2 in range(2):
                    b = 12 + 8 * h2
                    a(f'v_pk_add_f32 v[{b}:{b+1}], v[{b}:{b+1}], v[{b+2}:{b+3}]\nv_pk_add_f32 v[{b+4}:{b+5}], v[{b+4}:{b+5}], v[{b+6}:{b+7}]')
                    a(f'v_pk_add_f32 v[{b}:{b+1}], v[{b}:{b+1}], v[{b+4}:{b+5}]\nv_add_f32 v{250+h2}, v{b}, v{b+1}')
                    a(f'v_rcp_f32 v{252+h2}, v{250+h2}')
        for hg in range(2):
            X = 12 + 8 * hg
            for ct in range(4):
                d = AP + 16 * hg + 4 * ct
                for r in range(4):
                    a(f'v_mul_f32 v{d+r}, v{d+r}, v{252+hg}')
                a(f'v_cvt_pk_bf16_f32 v{X+2*ct}, v{d}, v{d+1}\nv_cvt_pk_bf16_f32 v{X+2*ct+1}, v{d+2}, v{d+3}')
                a(f'v_min_u32 v{X+2*ct}, -2, v{X+2*ct}\nv_min_u32 v{X+2*ct+1}, -2, v{X+2*ct+1}')
            for p in range(2):
                a(f'v_permlane16_swap_b32 v{X+4*p}, v{X+4*p+2}\nv_permlane16_swap_b32 v{X+4*p+1}, v{X+4*p+3}')
            so = 's57' if hg == 0 else 's59'
            for p in range(2):
                a(f'buffer_store_dwordx4 v[{X+4*p}:{X+4*p+3}], v4, s[40:43], {so} offen offset:{64*p} sc1')
        self.stamp(7)
        sk = self.lab('alse')
        a(f's_cmp_lg_u32 s35, 0\ns_cbranch_scc1 {sk}')
        a('v_log_f32 v250, v250\nv_log_f32 v251, v251')
        a('v_add_f32 v250, v250, v248\nv_add_f32 v251, v251, v249')
        a('v_cndmask_b32 v250, v250, v251, s[68:69]\nv_min_u32 v250, -2, v250')
        a('v_lshlrev_b32 v4, 2, v1')
        a('s_mov_b32 exec_hi, 0')
        a('buffer_store_dword v250, v4, s[40:43], s58 offen sc1')
        a('s_mov_b64 exec, -1')
        a.label(sk)
        self.write_stamps()
        a('s_endpgm')

    def role_F(self):
        a = self.a
        W, AF, WD, SEL, ACC = 32, 104, 176, 216, 224
        a.label('L_roleF')
        a('s_mul_i32 s38, s36, 9\ns_add_u32 s38, s38, s37\ns_sub_u32 s38, s38, 16')
        self.srd(44, 8, 9, 2304)
        a(f's_mul_i32 s56, s38, {64*1152}')
        self.srd(48, 26, 27, 4608 * 1152, 's56')
        a(f's_add_u32 s57, s38, 64\ns_mul_i32 s57, s57, 4608\ns_add_u32 s57, s57, {WS_CP}')
        sk = self.lab('fclr')
        a(f's_cmp_lg_u32 s35, 7\ns_cbranch_scc1 {sk}')
        self.clear_cp('s57')
        a.label(sk)
        self.ln_loads(None)
        a('v_cmp_lt_u32 vcc, 7, v3')
        a('v_mov_b32 v6, s22\nv_mov_b32 v7, s24\nv_cndmask_b32 v6, v6, v7, vcc')
        a('v_mov_b32 v7, s23\nv_mov_b32 v26, s25\nv_cndmask_b32 v7, v7, v26, vcc')
        a('s_mul_i32 s64, s35, 72\nv_mul_u32_u24 v26, 18, v2\nv_add_u32 v26, s64, v26\nv_mul_u32_u24 v26, 9216, v26')
        a('v_and_b32 v27, 7, v3\nv_lshl_add_u32 v26, v27, 4, v26\ns_lshl_b32 s64, s38, 7\nv_add_u32 v26, s64, v26')
        a('v_mov_b32 v27, 0')
        a('v_lshl_add_u64 v[6:7], v[26:27], 0, v[6:7]')
        a('s_mov_b32 s64, 9216\ns_mov_b32 s65, 0')
        for k in range(18):
            a(f'global_load_dwordx4 v[{W+4*k}:{W+4*k+3}], v[6:7], off nt')
            if k < 17:
                a('v_lshl_add_u64 v[6:7], v[6:7], 0, s[64:65]')
        a('s_lshl_b32 s64, s35, 3\nv_lshl_add_u32 v7, v2, 1, s64\nv_mul_u32_u24 v7, 1152, v7\nv_lshl_add_u32 v7, v3, 4, v7')
        for s in range(2):
            for cb in range(4):
                a(f'buffer_load_dwordx4 v[{WD+20*s+4*cb}:{WD+20*s+4*cb+3}], v7, s[48:51], 0 offen offset:{1152*s+256*cb} nt')
        a('s_mov_b32 exec_lo, 0x00ff00ff\ns_mov_b32 exec_hi, 0x00ff00ff')
        for s in range(2):
            a(f'buffer_load_dwordx4 v[{WD+20*s+16}:{WD+20*s+19}], v7, s[48:51], 0 offen offset:{1152*s+1024} nt')
        a('s_mov_b64 exec, -1')
        self.stamp(1)
        self.sels(SEL)
        a('s_waitcnt vmcnt(28) lgkmcnt(0)')
        self.flag_regs()
        self.flag_store(7, True)
        self.ln_compute(228, AF, SEL)
        self.stamp(2)
        R2, R3 = 0, 9216
        a('v_lshrrev_b32 v6, 5, v1\nv_mul_u32_u24 v6, 576, v6\nv_lshl_add_u32 v6, v3, 5, v6')
        a('v_and_b32 v8, 1, v2\nv_lshl_add_u32 v6, v8, 4, v6')
        a('s_mul_i32 s64, s35, 1152\nv_add_u32 v6, s64, v6')
        a('v_lshrrev_b32 v7, 3, v3\nv_mul_u32_u24 v7, 576, v7\nv_lshl_add_u32 v7, v2, 3, v7')
        a('s_lshl_b32 s64, s35, 5\nv_add_u32 v7, s64, v7')
        for k in range(18):
            a(f's_waitcnt vmcnt({28-k})')
            c = '0' if k == 0 else f'v[{ACC}:{ACC+3}]'
            a(f'v_mfma_f32_16x16x32_bf16 v[{ACC}:{ACC+3}], v[{AF+4*k}:{AF+4*k+3}], v[{W+4*k}:{W+4*k+3}], {c}')
        self.stamp(3)
        a(f'ds_write_b128 v6, v[{ACC}:{ACC+3}] offset:{R2}')
        a('s_waitcnt lgkmcnt(0)\ns_barrier')
        T = 32
        for w in range(8):
            a(f'ds_read_b64 v[{T+4*w}:{T+4*w+1}], v7 offset:{R2+w*1152}')
            a(f'ds_read_b64 v[{T+4*w+2}:{T+4*w+3}], v7 offset:{R2+w*1152+256}')
        for w in range(1, 8):
            a(f's_waitcnt lgkmcnt({14-2*w})')
            for p in range(2):
                a(f'v_pk_add_f32 v[{T+2*p}:{T+2*p+1}], v[{T+2*p}:{T+2*p+1}], v[{T+4*w+2*p}:{T+4*w+2*p+1}]')
        a(f'v_cvt_pk_bf16_f32 v8, v{T}, v{T+1}\nv_cvt_pk_bf16_f32 v9, v{T+2}, v{T+3}')
        a('v_lshlrev_b32 v10, 16, v8\nv_and_b32 v11, 0xffff0000, v8')
        k1 = hex(f2u(0.044715))
        k2 = hex(f2u(-2.0 * math.sqrt(2.0 / math.pi) * math.log2(math.e)))
        for r in (10, 11):
            a(f'v_mul_f32 v{r+2}, v{r}, v{r}')
            a(f'v_mul_f32 v{r+2}, {k1}, v{r+2}')
            a(f'v_fma_f32 v{r+2}, v{r+2}, v{r}, v{r}')
            a(f'v_mul_f32 v{r+2}, {k2}, v{r+2}')
            a(f'v_exp_f32 v{r+2}, v{r+2}')
            a(f'v_add_f32 v{r+2}, 1.0, v{r+2}')
            a(f'v_rcp_f32 v{r+2}, v{r+2}')
            a(f'v_mul_f32 v{r}, v{r}, v{r+2}')
        a('v_cvt_pk_bf16_f32 v8, v10, v11')
        a('v_lshlrev_b32 v10, 16, v8\nv_and_b32 v11, 0xffff0000, v8')
        a('v_lshlrev_b32 v12, 16, v9\nv_and_b32 v13, 0xffff0000, v9')
        a('v_mul_f32 v10, v10, v12\nv_mul_f32 v11, v11, v13')
        a('v_cvt_pk_bf16_f32 v8, v10, v11')
        for s in range(2):
            self.afrag(12 + 4 * s, 8, s, SEL)
        a('s_waitcnt vmcnt(1)')
        O = 228
        for s in range(2):
            for cb in range(5):
                c = '0' if s == 0 else f'v[{O+4*cb}:{O+4*cb+3}]'
                a(f'v_mfma_f32_16x16x32_bf16 v[{O+4*cb}:{O+4*cb+3}], v[{12+4*s}:{15+4*s}], v[{WD+20*s+4*cb}:{WD+20*s+4*cb+3}], {c}')
        self.stamp(4)
        self.final_reduce_store(O, 's57', R3)
        self.stamp(5)
        self.write_stamps()
        a('s_endpgm')

    def role_P(self):
        a = self.a
        a.label('L_roleP')
        a('s_getpc_b64 s[4:5]')
        a.label('L_pcref')
        a(f's_sub_u32 s4, s4, L_pcref-{KN}\ns_subb_u32 s5, s5, 0')
        a('v_lshlrev_b32 v4, 7, v0')
        a(f'v_min_u32 v4, L_end-{KN}, v4')
        a('global_load_dword v21, v4, s[4:5]')
        a(f's_sub_u32 s38, s2, {ID_C}')
        a(f's_cmp_ge_u32 s38, {NC}\ns_cbranch_scc1 L_end')
        self.srd(44, 8, 9, 2304)
        self.srd(48, 28, 29, 2304)
        a('s_lshl_b32 s56, s38, 6\nv_lshlrev_b32 v6, 1, v1')
        a('buffer_load_ushort v20, v6, s[44:47], s56 offen')
        a('s_waitcnt lgkmcnt(0)')
        self.flag_regs()
        sk = self.lab('cflag')
        a(f's_cmp_lg_u32 s35, 0\ns_cbranch_scc1 {sk}')
        self.flag_store(0, False)
        self.poll_flags([(0, 64), (ID_F, 64), (ID_F + 64, 8), (ID_C, NC)])
        a.label(sk)
        a('v_lshrrev_b32 v4, 3, v0\nv_mul_u32_u24 v4, 4608, v4\nv_and_b32 v5, 7, v0\nv_lshl_add_u32 v4, v5, 4, v4')
        a(f's_lshl_b32 s57, s38, 7\ns_add_u32 s57, s57, {WS_CP}')
        a(f's_add_u32 s58, s57, {64*4608}')
        a(f's_add_u32 s59, s57, {128*4608}')
        a('s_cmp_eq_u32 s35, 0\ns_cselect_b32 s59, s59, s58\ns_cselect_b32 s55, 1.0, 0')
        a('s_barrier')
        self.stamp(1)

        def issue():
            a('buffer_load_dwordx4 v[8:11], v4, s[40:43], s57 offen sc1')
            a('buffer_load_dwordx4 v[12:15], v4, s[40:43], s58 offen sc1')
            a('buffer_load_dwordx4 v[16:19], v4, s[40:43], s59 offen sc1')
        self.poll_data(issue, list(range(8, 20)), 7)
        self.stamp(2)
        sk = self.lab('cadd')
        a(f's_cmp_lg_u32 s35, 0\ns_cbranch_scc1 {sk}')
        a('v_pk_add_f32 v[12:13], v[12:13], v[16:17]\nv_pk_add_f32 v[14:15], v[14:15], v[18:19]')
        a.label(sk)
        a('s_nop 1')
        for r in range(8, 16):
            a(f'v_add_f32_dpp v{r}, v{r}, v{r} row_ror:8 row_mask:0xf bank_mask:0xf')
        for r in range(4):
            a(f'v_permlane16_swap_b32 v{8+r}, v{12+r}')
        for r in range(4):
            a(f'v_add_f32 v{8+r}, v{8+r}, v{12+r}')
        for r in range(4):
            a(f'v_mov_b32 v{12+r}, v{8+r}')
        for r in range(4):
            a(f'v_permlane32_swap_b32 v{8+r}, v{12+r}')
        for r in range(4):
            a(f'v_add_f32 v{8+r}, v{8+r}, v{12+r}')
        a('v_lshlrev_b32 v5, 4, v5\nv_and_b32 v6, 1, v2\nv_lshl_add_u32 v5, v6, 7, v5\ns_lshl_b32 s64, s35, 8\nv_add_u32 v5, s64, v5')
        a('s_mov_b32 exec_lo, 0x00ff00ff\ns_mov_b32 exec_hi, 0')
        a('ds_write_b128 v5, v[8:11]')
        a('s_mov_b64 exec, -1')
        a('s_waitcnt lgkmcnt(0)\ns_barrier')
        a('s_cmp_lg_u32 s35, 0\ns_cbranch_scc1 L_end')
        a('v_lshlrev_b32 v5, 2, v1')
        for w in range(8):
            a(f'ds_read_b32 v{8+w}, v5 offset:{256*w}')
        a('s_waitcnt lgkmcnt(0)')
        a('v_add_f32 v8, v8, v9\nv_add_f32 v10, v10, v11\nv_add_f32 v12, v12, v13\nv_add_f32 v14, v14, v15')
        a('v_add_f32 v8, v8, v10\nv_add_f32 v12, v12, v14\nv_add_f32 v8, v8, v12')
        a('v_cvt_pk_bf16_f32 v8, v8, v8\nv_and_b32 v8, 0xffff0000, v8')
        a('v_mov_b32 v9, v8')
        a('v_permlane32_swap_b32 v8, v9')
        a(f'v_mul_f32 v10, {hex(f2u(-math.log2(math.e)))}, v9')
        a('v_exp_f32 v10, v10\nv_add_f32 v10, 1.0, v10\nv_rcp_f32 v10, v10\nv_mul_f32 v9, v9, v10')
        a('v_cvt_pk_bf16_f32 v9, v9, v9\nv_and_b32 v9, 0xffff0000, v9')
        a('v_mul_f32 v8, v8, v9\nv_cvt_pk_bf16_f32 v8, v8, v8\nv_and_b32 v8, 0xffff0000, v8')
        a('v_lshlrev_b32 v20, 16, v20\nv_add_f32 v8, v8, v20\nv_cvt_pk_bf16_f32 v8, v8, v8')
        a('v_lshlrev_b32 v6, 1, v1')
        a('s_mov_b32 exec_hi, 0')
        a('buffer_store_short v8, v6, s[48:51], s56 offen')
        self.stamp(3)
        sk = self.lab('cep')
        a(f's_cmp_lg_u32 s38, 0\ns_cbranch_scc1 {sk}')
        a('s_mov_b64 exec, 1\nv_mov_b32 v8, s60\nv_mov_b32 v6, 0')
        a(f'buffer_store_dword v8, v6, s[40:43], 0 offen offset:{WS_EPOCH}')
        a.label(sk)
        a('s_mov_b64 exec, -1')
        self.write_stamps()

    def build(self):
        a = self.a
        a.raw('; @launch grid=(256,1,1) block=(512,1,1) lds=131072')
        a.raw('.amdgcn_target "amdgcn-amd-amdhsa--gfx950"')
        a.raw(f'.text\n.globl {KN}\n.p2align 8\n.type {KN},@function\n{KN}:')
        self.prologue()
        self.role_H()
        self.role_A()
        self.role_F()
        self.role_P()
        a.label('L_end')
        a('s_endpgm')
        a.raw('.section .rodata,"a"\n.p2align 6')
        a.raw(f'.amdhsa_kernel {KN}')
        a.raw('  .amdhsa_next_free_vgpr 256\n  .amdhsa_next_free_sgpr 102\n  .amdhsa_accum_offset 256')
        a.raw('  .amdhsa_group_segment_fixed_size 0\n  .amdhsa_kernarg_size 104\n  .amdhsa_user_sgpr_count 2')
        a.raw('  .amdhsa_user_sgpr_kernarg_segment_ptr 1\n  .amdhsa_system_sgpr_workgroup_id_x 1')
        a.raw('  .amdhsa_float_denorm_mode_32 3')
        a.raw('.end_amdhsa_kernel')
        return a.text()


if __name__ == '__main__':
    stamps = '--stamps' in sys.argv
    out = [x for x in sys.argv[1:] if not x.startswith('--')]
    g = Gen(stamps)
    t = g.build()
    if out:
        open(out[0], 'w').write(t)
    else:
        sys.stdout.write(t)
```

```python
import re

_REG = re.compile(r'^(-|abs\()?([vsa])(\d+)\)?$')
_RNG = re.compile(r'^(-|abs\()?([vsa])\[(\d+):(\d+)\]\)?$')


def regs(tok):
    tok = tok.strip()
    m = _REG.match(tok)
    if m:
        return {(m.group(2), int(m.group(3)))}
    m = _RNG.match(tok)
    if m:
        return {(m.group(2), i) for i in range(int(m.group(3)), int(m.group(4)) + 1)}
    if tok == 'vcc':
        return {('s', 'vcc')}
    if tok in ('vcc_lo', 'vcc_hi'):
        return {('s', 'vcc')}
    if tok == 'exec':
        return {('s', 'exec')}
    if tok == 'm0':
        return {('s', 'm0')}
    return set()


def split_ops(s):
    out, depth, cur = [], 0, ''
    for ch in s:
        if ch in '[(':
            depth += 1
        if ch in '])':
            depth -= 1
        if ch == ',' and depth == 0:
            out.append(cur.strip())
            cur = ''
        else:
            cur += ch
    if cur.strip():
        out.append(cur.strip())
    return out


TRANS = ('v_exp_f32', 'v_log_f32', 'v_rcp_f32', 'v_rsq_f32', 'v_sqrt_f32', 'v_sin_f32', 'v_cos_f32')


class Ins:
    __slots__ = ('text', 'mn', 'dst', 'src', 'kind', 'dpp', 'passes', 'srcc', 'ab', 'storedata', 'lds_dma', 'wide', 'dot_ab')

    def __init__(self, text):
        self.text = text
        t = text.split(';')[0].strip()
        parts = t.split(None, 1)
        self.mn = mn = parts[0]
        rest = parts[1] if len(parts) > 1 else ''
        ops = split_ops(rest)
        plain = []
        for o in ops:
            plain.append(o.split()[0] if o.split() else o)
        self.dpp = ('_dpp' in mn) or ('quad_perm' in t) or ('row_' in t and 'row_mask' in t)
        self.dst, self.src = set(), set()
        self.passes = 0
        self.srcc, self.ab, self.storedata = set(), set(), set()
        self.lds_dma = False
        self.wide = False
        self.dot_ab = set()
        if mn.startswith('v_dot'):
            self.dot_ab = regs(plain[1]) | regs(plain[2])
        if mn.startswith('v_mfma') or mn.startswith('v_smfmac'):
            self.kind = 'mfma'
            self.dst = regs(plain[0])
            self.ab = regs(plain[1]) | regs(plain[2])
            if mn.startswith('v_smfmac'):
                self.srcc = regs(plain[0])
                self.ab |= regs(plain[3])
            else:
                self.srcc = regs(plain[3])
            self.src = self.ab | self.srcc
            if '32x32x16' in mn or '32x32x32' in mn:
                self.passes = 8
            elif '16x16x32' in mn or '16x16x64' in mn:
                self.passes = 4
            else:
                raise ValueError(mn)
        elif mn.startswith('v_'):
            self.kind = 'trans' if any(mn.startswith(x) for x in TRANS) else 'valu'
            if mn.startswith('v_nop'):
                pass
            elif mn.startswith('v_permlane'):
                self.dst = regs(plain[0]) | regs(plain[1])
                self.src = set(self.dst)
            elif mn.startswith(('v_add_co', 'v_sub_co', 'v_addc_co', 'v_subb_co', 'v_div_scale', 'v_mad_u64_u32')):
                self.dst = regs(plain[0]) | regs(plain[1])
                for p in plain[2:]:
                    self.src |= regs(p)
            else:
                self.dst = regs(plain[0])
                for p in plain[1:]:
                    self.src |= regs(p)
                if mn.startswith(('v_fmac', 'v_dot2c', 'v_pk_fmac', 'v_writelane')) or self.dpp:
                    self.src |= self.dst
                if mn.startswith('v_cndmask') and len(plain) == 3:
                    self.src |= {('s', 'vcc')}
        elif mn.startswith(('buffer_', 'global_', 'flat_')):
            self.kind = 'vmem'
            self.lds_dma = ' lds' in (' ' + rest) and mn.startswith('buffer_load') or 'load_lds' in mn
            if mn.startswith('buffer_load') and not self.lds_dma:
                self.dst = regs(plain[0])
                for p in plain[1:]:
                    self.src |= regs(p)
            elif mn.startswith('global_load') and not self.lds_dma:
                self.dst = regs(plain[0])
                for p in plain[1:]:
                    self.src |= regs(p)
            else:
                for p in plain:
                    self.src |= regs(p)
                if mn.startswith('buffer_store'):
                    self.storedata = regs(plain[0])
                elif mn.startswith('global_store'):
                    self.storedata = regs(plain[1])
                self.wide = ('x4' in mn or 'x3' in mn) and 'store' in mn
            if self.lds_dma:
                self.src |= {('s', 'm0')}
        elif mn.startswith('ds_'):
            self.kind = 'ds'
            if mn.startswith(('ds_read', 'ds_bpermute', 'ds_permute', 'ds_swizzle')):
                self.dst = regs(plain[0])
                for p in plain[1:]:
                    self.src |= regs(p)
            else:
                for p in plain:
                    self.src |= regs(p)
        elif mn.startswith('s_'):
            self.kind = 'salu'
            if mn.startswith(('s_cmp', 's_cbranch', 's_branch', 's_waitcnt', 's_barrier', 's_nop', 's_endpgm', 's_sleep', 's_setprio', 's_bitcmp')):
                for p in plain:
                    self.src |= regs(p)
            else:
                self.dst = regs(plain[0]) if plain else set()
                for p in plain[1:]:
                    self.src |= regs(p)
                if 'saveexec' in mn:
                    self.dst |= {('s', 'exec')}
        else:
            raise ValueError('unknown instruction ' + text)

    def states(self):
        if self.mn == 's_nop':
            return int(self.text.split()[1]) + 1
        return 1


def need(prod, cons):
    n = 0
    pv = {r for r in prod.dst if r[0] in 'va'}
    ps = {r for r in prod.dst if r[0] == 's'}
    is_valu_p = prod.kind in ('valu', 'trans')
    is_valu_c = cons.kind in ('valu', 'trans')
    if is_valu_p:
        if pv & cons.src:
            if cons.dpp:
                n = max(n, 2)
            if cons.mn.startswith('v_permlane'):
                n = max(n, 2)
            if cons.mn.startswith(('v_readlane', 'v_readfirstlane')):
                n = max(n, 1)
            if cons.kind == 'mfma':
                n = max(n, 2)
            if prod.kind == 'trans' and cons.kind != 'trans':
                n = max(n, 1)
        hit = ps & cons.src
        if hit:
            if cons.kind == 'vmem':
                n = max(n, 5)
            elif cons.mn.startswith(('v_readlane', 'v_writelane')):
                n = max(n, 4)
            elif is_valu_c or cons.kind == 'mfma':
                n = max(n, 2)
            elif cons.kind == 'salu':
                n = max(n, 1)
    if prod.mn.startswith('v_dot') and (pv & (cons.src | cons.dst)):
        same = cons.mn == prod.mn
        ops_ab = getattr(cons, 'dot_ab', set())
        if not same or (pv & ops_ab):
            n = max(n, 3)
    if prod.kind == 'mfma':
        tbl_rd = {4: 8, 8: 12}
        tbl_ov = {4: 6, 8: 10}
        if cons.kind == 'mfma':
            if prod.dst & cons.ab:
                n = max(n, tbl_rd[prod.passes])
            if prod.dst & cons.srcc:
                if not (prod.dst == cons.srcc and prod.passes == cons.passes):
                    n = max(n, tbl_ov[prod.passes])
            if (prod.dst & cons.dst) and not (prod.dst == cons.srcc):
                n = max(n, tbl_rd[prod.passes])
        else:
            if prod.dst & (cons.src | cons.dst):
                n = max(n, tbl_rd[prod.passes])
            if is_valu_c and (prod.srcc & cons.dst):
                n = max(n, {4: 3, 8: 7}[prod.passes])
    if prod.kind == 'vmem' and prod.wide and (prod.storedata & cons.dst):
        n = max(n, 2)
    if prod.kind == 'salu' and ('s', 'm0') in prod.dst and cons.lds_dma:
        n = max(n, 1)
    return n


class Asm:
    def __init__(self):
        self.lines = []
        self.hist = []
        self.nnop = 0

    def raw(self, s):
        self.lines.append(s)

    def label(self, name):
        self.lines.append(name + ':')

    def __call__(self, s):
        for line in s.split('\n'):
            line = line.strip()
            if not line:
                continue
            if line.startswith(';'):
                self.lines.append('    ' + line)
                continue
            if line.endswith(':'):
                self.label(line[:-1])
                continue
            ins = Ins(line)
            dist = 0
            req = 0
            for p in reversed(self.hist):
                k = need(p, ins)
                if k > dist:
                    req = max(req, k - dist)
                dist += p.states()
                if dist >= 24:
                    break
            while req > 0:
                k = min(req, 16)
                nop = Ins(f's_nop {k-1}')
                self.lines.append(f'    s_nop {k-1}')
                self.hist.append(nop)
                self.nnop += 1
                req -= k
            self.lines.append('    ' + line)
            self.hist.append(ins)
            if len(self.hist) > 64:
                self.hist = self.hist[-40:]

    def text(self):
        return '\n'.join(self.lines) + '\n'
```

```python
import sys, math, struct
from asmlib import Asm

KN = 'recurrent_scan__compressed_kv_cla__geglu_ffn__decode_kernel'

WS_EPOCH = 0
WS_FLAGS = 0x1000
FL_HF, FL_A, FL_G = 0, 0x4000, 0x8000
WS_QA = 0x20000
WS_ML = 0x30000
WS_LP = 0x500000
WS_CP = 0x50000
WS_PART = 0x100000
PSTR = 32768 + 512
WS_QP = 0x340000
WS_STAMP = 0x400000
WS_SIZE = 0x10000000
LDS_BYTES = 163840
TIMEOUT = 1 << 21
ID_A, ID_F, NFIN = 64, 192, 72
SCALE = 128 ** -0.5 * math.log2(math.e)

MM, SM, IDX, MEAN, RDEN = 240, 244, 248, 249, 250
SLO, SHI = 238, 239
MW, MA, MACC, MT = 196, 220, 232, 28
UP = 131072
UKB, QL2, MBUF, CNT, MXB, STAT = 0, UP + 16384, UP + 20992, UP + 29184, UP + 29440, UP + 29696
XM = 240
POI = 252
DPPM = 'row_mask:0xf bank_mask:0xf'


def f2u(x):
    return struct.unpack('<I', struct.pack('<f', x))[0]


def hx(x):
    return hex(f2u(x))


class Gen:
    def __init__(self, stamps=False, opt=None):
        self.a = Asm()
        self.stamps = stamps
        self.uid = 0
        self.o = dict(a_clr_at=4, wo_pre=3, pf_wo=1, pf_wd=1, w0=0, w2=0, qp_sleep=4, gate_at=99, h_g=0, h_pre=2, fl_at=7, qa_at=11, f_pre=0, wd_pre=4, wd_mid=4)
        if opt:
            self.o.update(opt)
        self.tmo = self.o.get('tmo', TIMEOUT)

    def lab(self, p):
        self.uid += 1
        return f'L_{p}_{self.uid}'

    def stamp(self, k, late=False):
        if self.stamps and not (late and self.o.get('dbg_open')):
            assert k <= 10
            self.a(f's_memrealtime s[{80+2*k}:{81+2*k}]')

    def write_stamps(self, n=11):
        if not self.stamps:
            return
        a = self.a
        a('s_waitcnt lgkmcnt(0)')
        a('s_mov_b64 exec, 1')
        a(f's_lshl_b32 s64, s2, 3\ns_add_u32 s64, s64, s35\ns_lshl_b32 s64, s64, 6\ns_add_u32 s64, s64, {WS_STAMP}')
        a('v_mov_b32 v4, 0')
        for k in range(n):
            a(f'v_mov_b32 v5, s{80+2*k}')
            a(f'buffer_store_dword v5, v4, s[40:43], s64 offen offset:{4*k}')
        a('s_mov_b64 exec, -1')

    def srd(self, s, lo, size, add=None):
        a = self.a
        if add is None:
            a(f's_mov_b32 s{s}, s{lo}\ns_mov_b32 s{s+1}, s{lo+1}\ns_mov_b32 s{s+2}, {size}')
        else:
            a(f's_add_u32 s{s}, s{lo}, {add}\ns_addc_u32 s{s+1}, s{lo+1}, 0\ns_sub_u32 s{s+2}, {size}, {add}')
        a(f's_mov_b32 s{s+3}, 0x20000')

    def masks_mfma(self):
        a = self.a
        a(f'v_and_b32 v{MT}, 1, v3\nv_lshlrev_b32 v{MT}, 4, v{MT}')
        a(f'v_mov_b32 v{MT+1}, 0xffff\nv_lshlrev_b32 v{MT}, v{MT}, v{MT+1}')
        a(f'v_bfe_u32 v{MT+1}, v3, 1, 2')
        for r in range(4):
            a(f'v_cmp_eq_u32 vcc, {r}, v{MT+1}')
            a(f'v_cndmask_b32 v{MM+r}, 0, v{MT}, vcc')

    def masks_smf(self):
        a = self.a
        a(f'v_and_b32 v{MT}, 4, v3\nv_cmp_eq_u32 vcc, 0, v{MT}')
        a(f'v_mov_b32 v{MT}, 0xffff')
        a(f'v_cndmask_b32 v{SM}, 0, v{MT}, vcc')
        a(f'v_xor_b32 v{SM+1}, v{SM}, v{MT}')
        a(f'v_lshlrev_b32 v{SM+2}, 16, v{SM}\nv_lshlrev_b32 v{SM+3}, 16, v{SM+1}')
        a(f'v_and_b32 v{IDX}, 3, v3\nv_mul_u32_u24 v{IDX}, 0x5555, v{IDX}')

    def sfrag(self, dst, src, bcast=None):
        for r in range(4):
            if bcast is None:
                self.a(f'v_and_b32 v{dst+r}, v{src}, v{SM+r}')
            else:
                self.a(f'v_and_b32_dpp v{dst+r}, v{src}, v{SM+r} row_newbcast:{bcast} {DPPM}')

    def smf(self, acc, af, b):
        self.a(f'v_smfmac_f32_16x16x64_bf16 v[{acc}:{acc+3}], v[{af}:{af+3}], v[{b}:{b+7}], v{IDX}')

    def mfma(self, acc, af, b, first=False):
        c = '0' if first else f'v[{acc}:{acc+3}]'
        self.a(f'v_mfma_f32_16x16x32_bf16 v[{acc}:{acc+3}], v[{af}:{af+3}], v[{b}:{b+3}], {c}')

    def flag_regs(self):
        a = self.a
        a('s_add_u32 s60, s34, 0x9E3779B9')
        a('s_mul_i32 s61, s60, 0x85EBCA6B')
        a('s_not_b32 s62, s60')
        a('s_xor_b32 s63, s60, 0x5A5AA5A5')

    def flag_store(self, off, idx, setregs=True):
        a = self.a
        if setregs:
            a(f'v_mov_b32 v{POI}, s60\nv_mov_b32 v{POI+1}, s61\nv_mov_b32 v{POI+2}, s62\nv_mov_b32 v{POI+3}, s63')
        a(f's_lshl_b32 s64, {idx}, 7\ns_add_u32 s64, s64, {WS_FLAGS + off}')
        a('s_mov_b64 exec, 1')
        a(f'buffer_store_dwordx4 v[{POI}:{POI+3}], v1, s[40:43], s64 offen sc1')
        a('s_mov_b64 exec, -1')

    def poll_flags(self, vaddrs, vt, sleep=2, first_issued=False):
        a = self.a
        lp, done = self.lab('fl'), self.lab('fld')
        a(f's_mov_b32 s66, {self.tmo}\ns_mov_b32 s64, {WS_FLAGS}')
        if first_issued:
            mid = self.lab('flm')
            a(f's_branch {mid}')
        a.label(lp)
        for i, va in enumerate(vaddrs):
            a(f'buffer_load_dwordx4 v[{vt+4*i}:{vt+4*i+3}], v{va}, s[40:43], s64 offen sc1')
        if first_issued:
            a.label(mid)
        a('s_waitcnt vmcnt(0)')
        for i in range(len(vaddrs)):
            t = vt + 4 * i
            for r in range(4):
                a(f'v_xor_b32 v{t+r}, s{60+r}, v{t+r}')
            a(f'v_or3_b32 v{t}, v{t}, v{t+1}, v{t+2}')
            if i == 0:
                a(f'v_or_b32 v{vt}, v{t}, v{t+3}')
            else:
                a(f'v_or3_b32 v{vt}, v{vt}, v{t}, v{t+3}')
        a(f'v_cmp_ne_u32 vcc, 0, v{vt}')
        a(f's_cbranch_vccz {done}')
        a(f's_sleep {sleep}')
        a('s_sub_u32 s66, s66, 1\ns_cmp_lg_u32 s66, 0')
        a(f's_cbranch_scc1 {lp}')
        a.label(done)

    def poll_data(self, issue, dwords, vt, first_issued=False, first_wait=0):
        a = self.a
        lp, done = self.lab('pd'), self.lab('pdd')
        a(f's_mov_b32 s66, {self.tmo}')
        if first_issued:
            mid = self.lab('pdm')
            a(f's_waitcnt vmcnt({first_wait})\ns_branch {mid}')
        a.label(lp)
        issue()
        a('s_sub_u32 s66, s66, 1\ns_cmp_eq_u32 s66, 0')
        a('s_waitcnt vmcnt(0)')
        a(f's_cbranch_scc1 {done}')
        if first_issued:
            a.label(mid)
        d = list(dwords)
        a(f'v_max3_u32 v{vt}, v{d[0]}, v{d[1]}, v{d[2]}')
        d = d[3:]
        while len(d) >= 2:
            a(f'v_max3_u32 v{vt}, v{vt}, v{d[0]}, v{d[1]}')
            d = d[2:]
        if d:
            a(f'v_max_u32 v{vt}, v{vt}, v{d[0]}')
        a(f'v_cmp_eq_u32 vcc, -1, v{vt}')
        a(f's_cbranch_vccnz {lp}')
        a.label(done)

    def x_stat_addr(self):
        a = self.a
        a('v_lshrrev_b32 v4, 3, v3\nv_mul_u32_u24 v4, 1152, v4')
        a('v_and_b32 v6, 7, v3\nv_lshl_add_u32 v6, v2, 3, v6')
        a('v_lshl_add_u32 v5, v6, 4, v4\nv_lshl_add_u32 v6, v6, 2, v4')

    def x_stat_loads(self):
        a = self.a
        a('global_load_dwordx4 v[8:11], v5, s[8:9]')
        a('global_load_dwordx4 v[12:15], v5, s[8:9] offset:512')
        a('global_load_dword v16, v6, s[8:9] offset:1024')

    def ln_stats(self):
        a = self.a
        S, Q, T = MT, MT + 1, MT + 2
        a(f'v_mov_b32 v{S}, 0\nv_mov_b32 v{Q}, 0\ns_mov_b32 s64, 0x3f803f80')
        for k in range(9):
            a(f'v_dot2c_f32_bf16 v{S}, s64, v{8+k}')
            a(f'v_dot2c_f32_bf16 v{Q}, v{8+k}, v{8+k}')
        for m in ('quad_perm:[1,0,3,2]', 'quad_perm:[2,3,0,1]', 'row_half_mirror'):
            a(f'v_add_f32_dpp v{S}, v{S}, v{S} {m} {DPPM}')
            a(f'v_add_f32_dpp v{Q}, v{Q}, v{Q} {m} {DPPM}')
        a(f'v_permlane16_swap_b32 v{S}, v{Q}')
        a(f'v_add_f32 v{S}, v{S}, v{Q}')
        a(f'v_mov_b32 v{Q}, v{S}')
        a(f'v_permlane32_swap_b32 v{S}, v{Q}')
        a(f'v_add_f32 v{S}, v{S}, v{Q}')
        a(f'v_mul_f32 v{S}, {hx(1.0/576)}, v{S}')
        a(f'v_mov_b32 v{Q}, v{S}')
        a(f'v_permlane16_swap_b32 v{S}, v{Q}')
        a(f'v_fma_f32 v{Q}, -v{S}, v{S}, v{Q}')
        a(f'v_max_f32 v{Q}, 0, v{Q}')
        a(f'v_cvt_pk_bf16_f32 v{T}, v{S}, v{Q}')
        a(f'v_lshlrev_b32 v{MEAN}, 16, v{T}')
        a(f'v_and_b32 v{Q}, 0xffff0000, v{T}')
        a(f'v_add_f32 v{Q}, {hx(1e-5)}, v{Q}')
        a(f'v_cvt_pk_bf16_f32 v{Q}, v{Q}, v{Q}')
        a(f'v_lshlrev_b32 v{Q}, 16, v{Q}')
        a(f'v_sqrt_f32 v{Q}, v{Q}')
        a(f'v_cvt_pk_bf16_f32 v{Q}, v{Q}, v{Q}')
        a(f'v_lshlrev_b32 v{Q}, 16, v{Q}')
        a(f'v_rcp_f32 v{RDEN}, v{Q}')

    def ln_pair(self, src, dst):
        a, T = self.a, 26
        a(f'v_lshlrev_b32 v{T}, 16, v{src}\nv_and_b32 v{T+1}, 0xffff0000, v{src}')
        a(f'v_sub_f32 v{T}, v{T}, v{MEAN}\nv_sub_f32 v{T+1}, v{T+1}, v{MEAN}')
        a(f'v_cvt_pk_bf16_f32 v{dst}, v{T}, v{T+1}')
        a(f'v_lshlrev_b32 v{T}, 16, v{dst}\nv_and_b32 v{T+1}, 0xffff0000, v{dst}')
        a(f'v_mul_f32 v{T}, v{T}, v{RDEN}\nv_mul_f32 v{T+1}, v{T+1}, v{RDEN}')
        a(f'v_cvt_pk_bf16_f32 v{dst}, v{T}, v{T+1}')

    def mini_addr(self, MB):
        a = self.a
        a('v_lshrrev_b32 v6, 5, v1\nv_lshlrev_b32 v6, 9, v6\nv_lshl_add_u32 v6, v3, 5, v6')
        a('v_and_b32 v7, 1, v2\nv_lshl_add_u32 v6, v7, 4, v6')
        a(f's_lshl_b32 s64, s35, 10\ns_add_u32 s64, s64, {MB}\nv_add_u32 v6, s64, v6')
        a(f'v_lshl_add_u32 v7, v1, 4, s64')
        for r in range(4):
            a(f'v_mov_b32 v{MACC+r}, 0')

    def mini_mma(self, nafter=0, wait=True):
        a = self.a
        for s in range(3):
            self.ln_pair(XM + s, XM + s)
            self.sfrag(MA + 4 * s, XM + s)
        for s in range(3):
            a(f's_waitcnt vmcnt({nafter + 4 - 2*s})')
            self.smf(MACC, MA + 4 * s, MW + 8 * s)
        a(f'ds_write_b128 v6, v[{MACC}:{MACC+3}]')
        if wait:
            a('s_waitcnt lgkmcnt(0)')

    def mini_reduce(self, nparts):
        a = self.a
        for p in range(nparts):
            a(f'ds_read_b128 v[{MW+4*p}:{MW+4*p+3}], v7 offset:{1024*p}')
        for p in range(1, nparts):
            a(f's_waitcnt lgkmcnt({nparts-1-p})')
            a(f'v_pk_add_f32 v[{MW}:{MW+1}], v[{MW}:{MW+1}], v[{MW+4*p}:{MW+4*p+1}]')
            a(f'v_pk_add_f32 v[{MW+2}:{MW+3}], v[{MW+2}:{MW+3}], v[{MW+4*p+2}:{MW+4*p+3}]')

    def q_ids(self):
        a = self.a
        a('s_cmp_ge_u32 s37, 24\ns_cselect_b32 s64, 16, 0\ns_sub_u32 s77, s37, s64')
        a('s_lshr_b32 s70, s77, 2\ns_lshl_b32 s64, s36, 2\ns_add_u32 s70, s70, s64\ns_and_b32 s71, s77, 3')

    def q1_phase(self):
        a = self.a
        self.x_stat_addr()
        a('s_and_b32 s70, s2, 31\ns_lshr_b32 s71, s2, 5\ns_sub_u32 s71, s71, 2')
        a('s_mul_i32 s64, s71, 96\ns_mul_i32 s65, s35, 24\ns_add_u32 s65, s64, s65')
        a('v_mad_u32_u24 v7, v2, 6, s65\nv_lshl_add_u32 v7, v7, 1, v4')
        a('v_lshrrev_b32 v20, 1, v2\nv_mad_u32_u24 v20, v20, 6, s65\nv_and_b32 v21, 1, v2\nv_add_u32 v20, v20, v21')
        a('s_lshl_b32 s64, s70, 8\nv_lshlrev_b32 v20, 13, v20\nv_lshl_add_u32 v20, v3, 4, v20\nv_add_u32 v20, s64, v20')
        for k in range(1, 6):
            a(f'v_add_u32 v{20+k}, {(12*(k&1) + 2*(k>>1))*8192}, v20')
        a(f'v_mov_b32 v251, {CNT}\nv_mov_b32 v27, 0')
        a('ds_write2_b32 v251, v27, v27 offset1:1')
        a('s_waitcnt lgkmcnt(0)')
        self.x_stat_loads()
        a(f'global_load_dwordx3 v[{XM}:{XM+2}], v7, s[8:9]')
        a('s_barrier')
        for k in range(6):
            a(f'global_load_dwordx4 v[{MW+4*k}:{MW+4*k+3}], v{20+k}, s[12:13] nt')
        a('s_barrier')
        self.stamp(1)
        a(f's_load_dword s34, s[32:33], {WS_EPOCH}')
        self.srd(40, 32, WS_SIZE)
        self.masks_smf()
        self.mini_addr(MBUF)
        a('s_and_b32 s64, s71, 3\ns_lshr_b32 s65, s71, 2\ns_lshl_b32 s65, s65, 3\ns_or_b32 s64, s64, s65\ns_lshl_b32 s64, s64, 9')
        a(f's_lshl_b32 s65, s70, 13\ns_add_u32 s64, s64, s65\ns_add_u32 s72, s64, {WS_QP}')
        a(f'v_mov_b32 v{SLO}, 0x05040100\nv_mov_b32 v{SHI}, 0x07060302')
        a('v_lshrrev_b32 v5, 5, v1\nv_lshlrev_b32 v5, 11, v5\nv_and_b32 v4, 31, v1\nv_lshl_add_u32 v5, v4, 4, v5')
        a('s_waitcnt vmcnt(7)')
        self.ln_stats()
        a(f'v_lshlrev_b32 v4, 3, v1\nv_add_u32 v4, {STAT}, v4')
        a('s_waitcnt vmcnt(6) lgkmcnt(0)')
        a(f'ds_write2_b32 v4, v{MEAN}, v{RDEN} offset1:1')
        self.flag_regs()
        self.mini_mma(wait=False)
        self.bump()
        self.stamp(2)
        sk = self.lab('q1pub')
        a(f's_cmp_lg_u32 s35, 0\ns_cbranch_scc1 {sk}')
        self.hold(4, sleep=0)
        self.mini_reduce(4)
        a(f'v_cvt_pk_bf16_f32 v{MW+4}, v{MW}, v{MW+1}\nv_cvt_pk_bf16_f32 v{MW+5}, v{MW+2}, v{MW+3}')
        a(f'v_perm_b32 v{MW}, v{MW+4}, s60, v{SLO}\nv_perm_b32 v{MW+1}, v{MW+4}, s60, v{SHI}')
        a(f'v_perm_b32 v{MW+2}, v{MW+5}, s61, v{SLO}\nv_perm_b32 v{MW+3}, v{MW+5}, s61, v{SHI}')
        a(f'buffer_store_dwordx4 v[{MW}:{MW+3}], v5, s[40:43], s72 offen sc1')
        self.bump()
        a.label(sk)

    def code_prefetch(self, first_wave, nw):
        a = self.a
        ref = self.lab('pcref')
        a('s_getpc_b64 s[4:5]')
        a.label(ref)
        a(f's_sub_u32 s4, s4, {ref}-{KN}\ns_subb_u32 s5, s5, 0')
        a(f's_sub_u32 s64, s37, 8\ns_lshl_b32 s64, s64, 2\ns_add_u32 s64, s64, s35\ns_sub_u32 s64, s64, 4\ns_lshl_b32 s64, s64, 7')
        a(f'v_lshlrev_b32 v4, 13, v2\nv_add_u32 v4, s64, v4\nv_min_u32 v4, L_end-{KN}, v4')
        a('global_load_dword v195, v4, s[4:5]')

    def bump(self, c=0):
        a = self.a
        a('v_mov_b32 v31, 1\ns_mov_b64 exec, 1')
        a(f'ds_add_u32 v251, v31 offset:{4*c}')
        a('s_mov_b64 exec, -1')

    def late_common(self):
        a = self.a
        a('s_waitcnt lgkmcnt(0)')
        a(f's_load_dword s34, s[32:33], {WS_EPOCH}')
        self.srd(40, 32, WS_SIZE)
        for r in range(4):
            a(f'v_mov_b32 v{POI+r}, -1')

    def r3_read_store(self, nparts, rowreg, vaddr, vgaddr):
        a = self.a
        skip = self.lab('fr')
        a(f's_cmp_gt_u32 s35, 4\ns_cbranch_scc1 {skip}')
        a('s_cmp_eq_u32 s35, 4\ns_cselect_b32 exec_hi, 0, -1')
        for w in range(nparts):
            a(f'ds_read_b128 v[{32+4*w}:{35+4*w}], v{vaddr} offset:{w*4608}')
        for w in range(1, nparts):
            a(f's_waitcnt lgkmcnt({nparts-1-w})')
            a(f'v_pk_add_f32 v[32:33], v[32:33], v[{32+4*w}:{33+4*w}]')
            a(f'v_pk_add_f32 v[34:35], v[34:35], v[{34+4*w}:{35+4*w}]')
        a(f'buffer_store_dwordx4 v[32:35], v{vgaddr}, s[40:43], {rowreg} offen sc1')
        a('s_mov_b64 exec, -1')
        a.label(skip)

    def r3_waddr(self, dst, tmp, base_sreg):
        a = self.a
        a(f'v_lshrrev_b32 v{dst}, 5, v1\nv_mul_u32_u24 v{dst}, 2304, v{dst}\nv_lshl_add_u32 v{dst}, v3, 5, v{dst}')
        a(f'v_and_b32 v{tmp}, 1, v2\nv_lshl_add_u32 v{dst}, v{tmp}, 4, v{dst}\nv_add_u32 v{dst}, {base_sreg}, v{dst}')

    def prologue(self):
        a = self.a
        if self.stamps:
            for k in range(1, 11):
                a(f's_mov_b32 s{80+2*k}, 0')
        self.stamp(0)
        a('s_cmp_ge_u32 s2, 256\ns_cbranch_scc1 L_end')
        a('s_load_dwordx16 s[8:23], s[0:1], 0')
        a('s_load_dwordx8 s[24:31], s[0:1], 64')
        a('s_load_dwordx2 s[32:33], s[0:1], 96')
        a('v_lshrrev_b32 v2, 6, v0')
        a('v_and_b32 v1, 63, v0')
        a('v_readfirstlane_b32 s35, v2')
        a('v_lshrrev_b32 v2, 4, v1\nv_and_b32 v3, 15, v1')
        a('s_and_b32 s36, s2, 7\ns_lshr_b32 s37, s2, 3')
        a('s_setprio 2')
        a('v_mov_b32 v5, 0\nv_mov_b32 v29, 0')
        if self.o.get('kill_H'):
            a('s_cmp_lt_u32 s37, 8\ns_cbranch_scc1 L_end')
        if self.o.get('kill_F'):
            a('s_cmp_ge_u32 s37, 24\ns_cbranch_scc1 L_end')
        if self.o.get('kill_A'):
            a('s_sub_u32 s64, s37, 8\ns_cmp_lt_u32 s64, 16\ns_cbranch_scc1 L_end')
        a('s_cmp_lt_u32 s37, 8\ns_cbranch_scc1 L_H_start')
        a('s_cmp_gt_u32 s35, 3\ns_cbranch_scc1 L_noq1')
        self.q1_phase()
        a('s_cmp_ge_u32 s37, 24\ns_cbranch_scc1 L_F_go')
        a('s_branch L_A_go')
        a.label('L_noq1')
        a('s_cmp_lt_u32 s37, 24\ns_cbranch_scc1 L_roleA')
        self.clear_and_flag(False)
        a('s_branch L_roleF')
        a.label('L_H_start')
        self.h_params()
        a('s_lshl_b32 s73, s35, 13\ns_lshl_b32 s65, s35, 5\ns_lshl_b32 s64, s39, 8\ns_add_u32 s64, s64, s65')
        a('v_add_u32 v20, s64, v2\nv_lshlrev_b32 v20, 13, v20\nv_xor_b32 v21, v3, v2\nv_lshl_add_u32 v20, v21, 4, v20')
        for i in range(1, 4):
            a(f'v_xor_b32 v{20+i}, {64*i}, v20')
        a('s_mov_b32 s74, 0')
        self.clear_and_flag(True)
        self.q2_phase()
        a('s_branch L_roleH')

    def clear_and_flag(self, isH):
        a = self.a
        self.cp_row()
        if isH:
            a('v_lshrrev_b32 v5, 5, v1\nv_lshlrev_b32 v5, 15, v5\nv_and_b32 v4, 31, v1\nv_lshl_add_u32 v4, v4, 4, v5')
            a(f's_add_u32 s72, s58, {WS_QA}')
        a('v_lshlrev_b32 v5, 4, v1\nv_and_b32 v6, 0x1ff, v5\nv_add_u32 v6, 4096, v6')
        self.late_common()
        sk = self.lab('clr')
        a(f's_cmp_lg_u32 s35, 7\ns_cbranch_scc1 {sk}')
        if isH:
            a(f'buffer_store_dwordx4 v[{POI}:{POI+3}], v4, s[40:43], s72 offen sc1')
        for i in range(4):
            a(f'buffer_store_dwordx4 v[{POI}:{POI+3}], v5, s[40:43], s57 offen offset:{i*1024} sc1')
        a(f'buffer_store_dwordx4 v[{POI}:{POI+3}], v6, s[40:43], s57 offen sc1')
        a.label(sk)
        n = 0
        if isH:
            self.srd(52, 14, 512 * 8192, 's56')
            n = 8
            for i in range(8):
                a('s_mov_b32 m0, s73\ns_add_u32 s73, s73, 1024')
                a(f'buffer_load_dwordx4 v{20+(i&3)}, s[52:55], s74 offen nt lds')
                a('s_add_u32 s74, s74, 32768')
            self.stamp(1)
        else:
            a('s_barrier\ns_barrier')
            a(f'v_mov_b32 v251, {CNT}')
        self.masks_smf()
        a(f'v_mov_b32 v{SLO}, 0x05040100\nv_mov_b32 v{SHI}, 0x07060302')
        a('s_waitcnt lgkmcnt(0)')
        self.flag_regs()
        sk = self.lab('flg')
        a(f's_cmp_lg_u32 s35, 7\ns_cbranch_scc1 {sk}')
        a('s_lshl_b32 s65, s36, 3\ns_add_u32 s65, s65, s37' + ('' if isH else '\ns_add_u32 s65, s65, 40'))
        a(f's_waitcnt vmcnt({n})')
        self.flag_store(FL_HF, 's65')
        a.label(sk)

    def cp_row(self):
        a = self.a
        a('s_lshl_b32 s64, s36, 3\ns_add_u32 s64, s64, s37\ns_add_u32 s64, s64, 40\ns_cmp_ge_u32 s37, 24\ns_cselect_b32 s57, s64, s2')
        a(f's_mul_i32 s57, s57, 4608\ns_add_u32 s57, s57, {WS_CP}')

    def stat_read(self):
        a = self.a
        a(f'v_lshlrev_b32 v4, 3, v1\nv_add_u32 v4, {STAT}, v4')
        a(f'ds_read2_b32 v[18:19], v4 offset1:1')
        a(f's_waitcnt lgkmcnt(0)\nv_mov_b32 v{MEAN}, v18\nv_mov_b32 v{RDEN}, v19')

    def hold(self, n, c=0, vt=31, sleep=1):
        a = self.a
        lp, done = self.lab('hold'), self.lab('holdd')
        a(f's_mov_b32 s67, {self.tmo * 8}')
        a.label(lp)
        a(f'ds_read_b32 v{vt}, v251 offset:{4*c}')
        a('s_sub_u32 s67, s67, 1\ns_cmp_eq_u32 s67, 0')
        a(f's_cbranch_scc1 {done}')
        if sleep:
            a(f's_sleep {sleep}')
        a('s_waitcnt lgkmcnt(0)')
        a(f'v_cmp_gt_u32 vcc, {n}, v{vt}')
        a(f's_cbranch_vccnz {lp}')
        a.label(done)
        a('s_waitcnt lgkmcnt(0)')

    def q2_phase(self):
        a, o = self.a, self.o
        UK, BFQ, DQ = 32, 64, 80
        a(f's_lshl_b32 s64, s35, 13\nv_lshl_add_u32 v24, v3, 8, s64\nv_xor_b32 v21, v3, v2\nv_lshl_add_u32 v24, v21, 4, v24')
        for s in range(1, 4):
            a(f'v_xor_b32 v{24+s}, {64*s}, v24')
        a(f'v_mul_u32_u24 v7, 288, v3\nv_lshl_add_u32 v7, v2, 4, v7\nv_add_u32 v7, {QL2}, v7')
        a('v_bfe_u32 v22, v3, 2, 1\nv_lshlrev_b32 v22, 15, v22\nv_lshrrev_b32 v23, 3, v3\nv_lshl_add_u32 v22, v23, 5, v22\nv_lshl_add_u32 v22, v2, 3, v22')
        a(f's_lshl_b32 s65, s35, 6\ns_add_u32 s64, s58, s65\ns_add_u32 s73, s64, {WS_QA}')
        a('v_cmp_lt_u32 s[68:69], 7, v3')
        lp, done, skip, first = self.lab('qp'), self.lab('qpd'), self.lab('qps'), self.lab('qpf')
        a('s_and_b32 s64, s35, 3\ns_lshr_b32 s65, s35, 2\ns_lshl_b32 s65, s65, 3\ns_or_b32 s64, s64, s65')
        a('v_lshrrev_b32 v4, 5, v1\nv_lshl_add_u32 v4, v4, 2, s64\nv_and_b32 v5, 31, v1')
        a(f'v_mul_u32_u24 v6, 288, v4\nv_lshl_add_u32 v6, v5, 3, v6\nv_add_u32 v6, {QL2}, v6')
        a('v_lshlrev_b32 v4, 9, v4\nv_lshl_add_u32 v4, v5, 4, v4')
        a(f's_lshl_b32 s72, s38, 13\ns_add_u32 s72, s72, {WS_QP}')
        a(f'v_mov_b32 v8, 0\nv_mov_b32 v9, 0\ns_cmp_gt_u32 s35, 5\ns_cbranch_scc1 {done}')
        if o.get('qp_bar', 1):
            pass
        a(f's_mov_b32 s66, {self.tmo}\ns_branch {first}')
        a.label(lp)
        if o['qp_sleep']:
            a(f's_sleep {o["qp_sleep"]}')
        a.label(first)
        a('buffer_load_dwordx4 v[12:15], v4, s[40:43], s72 offen sc1')
        a('s_sub_u32 s66, s66, 1\ns_cmp_eq_u32 s66, 0')
        a('s_waitcnt vmcnt(0)')
        a(f'v_perm_b32 v8, v13, v12, v{SHI}\nv_perm_b32 v9, v15, v14, v{SHI}')
        a(f's_cbranch_scc1 {done}')
        a(f'v_perm_b32 v28, v13, v12, v{SLO}\nv_perm_b32 v29, v15, v14, v{SLO}')
        a('v_xor_b32 v28, s60, v28\nv_xor_b32 v29, s61, v29\nv_or_b32 v28, v28, v29')
        a('v_cmp_ne_u32 vcc, 0, v28')
        a(f's_cbranch_vccnz {lp}')
        a.label(done)
        a('ds_write_b64 v6, v[8:9]')
        self.stamp(4)
        a('s_waitcnt vmcnt(0) lgkmcnt(0)\ns_barrier')
        self.stamp(5)
        for s in range(4):
            a(f'ds_read_b128 v[{BFQ+4*s}:{BFQ+4*s+3}], v7 offset:{64*s}')
            for t in range(2):
                a(f'ds_read_b128 v[{UK+16*t+4*s}:{UK+16*t+4*s+3}], v{24+s} offset:{4096*t}')
        a('s_mov_b64 vcc, s[68:69]')
        for s in range(4):
            a(f's_waitcnt lgkmcnt({9-3*s})')
            for t in range(2):
                self.mfma(DQ + 4 * t, UK + 16 * t + 4 * s, BFQ + 4 * s, s == 0)
        for r in range(4):
            a(f'v_cndmask_b32 v{8+r}, v{DQ+4+r}, v{DQ+r}, vcc')
        for r in range(4):
            a(f'v_cndmask_b32 v{DQ+r}, v{DQ+r}, v{DQ+4+r}, vcc')
        for r in range(4):
            a(f'v_add_f32_dpp v{DQ+r}, v{8+r}, v{DQ+r} row_ror:8 {DPPM}')
        for m in ('quad_perm:[1,0,3,2]', 'quad_perm:[2,3,0,1]'):
            for r in range(4):
                a(f'v_add_f32_dpp v{DQ+r}, v{DQ+r}, v{DQ+r} {m} {DPPM}')
        a('s_mov_b32 exec_lo, 0x11111111\ns_mov_b32 exec_hi, 0x11111111')
        a(f'v_cvt_pk_bf16_f32 v8, v{DQ}, v{DQ+1}\nv_cvt_pk_bf16_f32 v9, v{DQ+2}, v{DQ+3}')
        a('buffer_store_dwordx2 v[8:9], v22, s[40:43], s73 offen sc1')
        a('s_mov_b64 exec, -1')
        a('s_barrier')
        self.stamp(6)
        self.cp_row()

    def gate(self, idx):
        a = self.a
        sk = self.lab('gate')
        a(f's_cmp_lg_u32 s35, 7\ns_cbranch_scc1 {sk}')
        a(f's_lshl_b32 s64, s36, 3\ns_add_u32 s64, s64, {idx}\ns_lshl_b32 s64, s64, 7\ns_add_u32 s64, s64, {FL_G}\nv_mov_b32 v30, s64')
        self.poll_flags([30], 12, sleep=self.o.get('gate_sleep', 4))
        a.label(sk)
        a('s_barrier')

    def h_params(self):
        a = self.a
        a('s_lshr_b32 s38, s37, 1\ns_lshl_b32 s64, s36, 2\ns_add_u32 s38, s38, s64\ns_and_b32 s39, s37, 1')
        a('s_lshl_b32 s56, s38, 8')
        a('s_lshl_b32 s58, s38, 10\ns_lshl_b32 s64, s39, 9\ns_add_u32 s58, s58, s64')

    def role_H(self):
        a, o = self.a, self.o
        W4B, R3, R1 = 65536, 81920, 102400
        WO, UVT, BF2, A2 = 32, 160, 8, 224

        a.label('L_roleH')
        a('s_mul_i32 s64, s38, 147456')
        a('s_add_u32 s52, s18, s64\ns_addc_u32 s53, s19, 0\ns_mov_b32 s54, 147456\ns_mov_b32 s55, 0x20000')
        a(f'v_lshlrev_b32 v236, 4, v0\nv_add_u32 v237, {R3}, v236')
        a('s_cmp_ge_u32 s35, 4\ns_cbranch_scc1 L_H_gather')
        a('s_setprio 0')
        a('v_lshrrev_b32 v4, 1, v2\nv_lshlrev_b32 v4, 2, v4\nv_and_b32 v5, 1, v2\nv_add_u32 v4, v4, v5')
        a('s_lshl_b32 s64, s35, 5\nv_add_u32 v4, s64, v4')
        a('v_mul_u32_u24 v5, 1152, v4\nv_lshl_add_u32 v5, v3, 4, v5')
        a('s_mul_i32 s70, s39, 18432\ns_xor_b32 s71, s39, 1\ns_mul_i32 s71, s71, 18432')
        wl = [(s, hf) for s in range(4) for hf in range(2)]

        def wo_loads(lst):
            for s, hf in lst:
                a(f's_add_u32 s64, s{70 + (s>>1)}, {(8*hf + 2*(s&1))*1152}')
                for cb in range(4):
                    r = WO + 32 * s + 8 * cb + 4 * hf
                    a(f'buffer_load_dwordx4 v[{r}:{r+3}], v5, s[52:55], s64 offen offset:{256*cb}')
        if o['h_g']:
            a('s_barrier')
        wo_loads(wl[:o.get('wo_pre', 3)])
        a(f'v_and_b32 v6, 7, v3\nv_lshlrev_b32 v6, 4, v6\nv_lshl_add_u32 v6, v4, 7, v6\nv_add_u32 v6, {W4B}, v6')
        a('s_lshl_b32 s64, s39, 11\nv_add_u32 v6, s64, v6\nv_xor_b32 v7, 2048, v6')
        a('v_lshrrev_b32 v8, 2, v3\nv_lshl_add_u32 v9, v2, 3, v8\nv_lshlrev_b32 v9, 8, v9')
        a('v_and_b32 v10, 1, v2\nv_lshlrev_b32 v10, 1, v10\nv_lshl_or_b32 v10, v8, 2, v10')
        a('s_lshl_b32 s64, s35, 2\ns_lshl_b32 s65, s39, 1\ns_or_b32 s64, s64, s65')
        a('v_bfe_u32 v11, v3, 1, 1\nv_or_b32 v11, s64, v11\nv_xor_b32 v10, v10, v11\nv_lshl_add_u32 v9, v10, 4, v9')
        a('v_and_b32 v10, 1, v3\nv_lshl_add_u32 v9, v10, 3, v9')
        a('v_xor_b32 v10, 16, v9\nv_add_u32 v10, 1024, v10')
        a('s_barrier')
        for tt in range(2):
            for hh in range(2):
                a(f'v_xor_b32 v11, {32*tt}, v{9+hh}')
                for ks in range(8):
                    r = UVT + 32 * tt + 4 * ks + 2 * hh
                    a(f'ds_read_b64_tr_b16 v[{r}:{r+1}], v11 offset:{8192*ks}')
        wo_loads(wl[o.get('wo_pre', 3):])
        a('s_setprio 2')
        if o.get('w_land'):
            a('s_waitcnt vmcnt(0)')
        a('s_barrier')
        a(f'v_lshrrev_b32 v4, 3, v3\nv_mul_u32_u24 v4, 576, v4\nv_lshl_add_u32 v4, v2, 4, v4\nv_add_u32 v4, {R1}, v4')
        a(f's_mul_i32 s64, s35, 4608\ns_add_u32 s64, s64, {R3}')
        self.r3_waddr(5, 9, 's64')
        a('s_waitcnt vmcnt(0) lgkmcnt(0)')
        self.stamp(7)
        a('s_barrier')
        self.stamp(8)
        for ks in range(4):
            a(f'ds_read_b128 v[{BF2+4*ks}:{BF2+4*ks+3}], v4 offset:{64*ks}')
        for ks in range(8):
            a(f's_waitcnt lgkmcnt({min(3, 7-ks)})')
            for tt in range(2):
                self.mfma(A2 + 4 * tt, UVT + 32 * tt + 4 * ks, BF2 + 4 * (ks & 3), ks == 0)
            if ks < 4:
                a(f'ds_read_b128 v[{BF2+4*ks}:{BF2+4*ks+3}], v4 offset:{64*(ks+4)}')
            if 2 <= ks <= 6:
                for r in range(4):
                    a(f'v_mov_b32 v{UVT+4*(ks-2)+r}, 0')
        OA, C4, AF3 = 160, 192, 8
        for s in range(4):
            for hf in range(2):
                r = C4 + 8 * s + 4 * hf
                a(f'ds_read_b128 v[{r}:{r+3}], v{6 + (s>>1)} offset:{(8*hf + 2*(s&1))*128}')
        for s in range(4):
            a(f'v_cvt_pk_bf16_f32 v{24+s}, v{A2+2*s}, v{A2+2*s+1}')
        for s in range(4):
            self.sfrag(AF3 + 4 * s, 24 + s)
            for cb in range(4):
                self.smf(OA + 4 * cb, AF3 + 4 * s, WO + 32 * s + 8 * cb)
        a('s_waitcnt lgkmcnt(0)')
        for s in range(4):
            self.smf(OA + 16, AF3 + 4 * s, C4 + 8 * s)
        for cb in range(4):
            a(f'ds_write_b128 v5, v[{OA+4*cb}:{OA+4*cb+3}] offset:{cb*512}')
        a('s_mov_b32 exec_lo, 0x00ff00ff\ns_mov_b32 exec_hi, 0x00ff00ff')
        a(f'ds_write_b128 v5, v[{OA+16}:{OA+19}] offset:2048')
        a('s_mov_b64 exec, -1')
        a('s_waitcnt lgkmcnt(0)')
        self.stamp(9)
        a('s_branch L_H_join')
        a.label('L_H_gather')
        G = 32
        self.srd(48, 16, 512 * 8192, 's56')
        a('s_sub_u32 s70, s35, 4')
        a('s_lshl_b32 s64, s39, 8\ns_lshl_b32 s65, s70, 6\ns_add_u32 s64, s64, s65')
        a('v_add_u32 v20, s64, v2\nv_lshlrev_b32 v20, 13, v20\nv_lshlrev_b32 v5, 2, v2\nv_xor_b32 v5, v5, v3\nv_lshl_add_u32 v20, v5, 4, v20')
        for i in range(1, 4):
            a(f'v_xor_b32 v{20+i}, {16*i}, v20')
        a('s_lshl_b32 s73, s70, 14\ns_mov_b32 s74, 0')

        def uvdma(i0, i1):
            for i in range(i0, i1):
                a('s_mov_b32 m0, s73\ns_add_u32 s73, s73, 1024')
                a(f'buffer_load_dwordx4 v{20+(i&3)}, s[48:51], s74 offen nt lds')
                a('s_add_u32 s74, s74, 32768')
        uvdma(0, o['h_pre'])
        if o['h_g']:
            self.gate('s37')
        uvdma(o['h_pre'], 16)
        a('v_lshrrev_b32 v4, 3, v1\nv_mul_u32_u24 v4, 1152, v4\nv_and_b32 v5, 7, v1\nv_lshl_add_u32 v4, v5, 4, v4')
        a(f's_lshl_b32 s73, s70, 12\ns_add_u32 s73, s73, {W4B}\ns_mul_i32 s74, s70, {32*1152}\ns_add_u32 s74, s74, 1024')
        for i in range(4):
            a('s_mov_b32 m0, s73')
            a('buffer_load_dwordx4 v4, s[52:55], s74 offen lds')
            if i < 3:
                a(f's_add_u32 s73, s73, 1024\ns_add_u32 s74, s74, {8*1152}')
        a('s_lshr_b32 s64, s70, 1\ns_and_b32 s65, s70, 1')
        a('v_and_b32 v4, 7, v3\nv_lshl_add_u32 v4, v2, 3, v4\nv_lshlrev_b32 v4, 8, v4')
        a(f's_lshl_b32 s66, s64, 13\ns_lshl_b32 s67, s38, 3\ns_add_u32 s66, s66, s67\ns_add_u32 s71, s66, {WS_ML}')
        a('v_lshrrev_b32 v5, 1, v2\nv_lshlrev_b32 v5, 3, v5\nv_and_b32 v6, 1, v2\nv_add_u32 v5, v5, v6')
        a(f'v_mul_u32_u24 v5, {PSTR}, v5\nv_lshl_add_u32 v5, v3, 4, v5')
        a(f's_mul_i32 s66, s64, {32*PSTR}\ns_add_u32 s66, s66, s58\ns_lshl_b32 s67, s65, 8\ns_add_u32 s66, s66, s67\ns_add_u32 s72, s66, {WS_PART}')
        for k in range(1, 8):
            a(f's_add_u32 s{72+k}, s72, {(16*(k&1) + 2*(k>>1))*PSTR}')
        a(f's_mul_i32 s64, s64, 576\ns_add_u32 s64, s64, s67\ns_add_u32 s64, s64, {R1}')
        a('v_lshlrev_b32 v7, 3, v6\nv_lshl_add_u32 v7, v3, 4, v7\nv_add_u32 v7, s64, v7')
        a(f's_lshr_b32 s64, s38, 4\ns_lshl_b32 s64, s64, 13\ns_add_u32 s64, s64, {FL_A}\nv_lshl_add_u32 v8, v1, 7, s64')
        for r in range(4):
            a(f'v_mov_b32 v{24+r}, 0')
        a('s_waitcnt vmcnt(0)')
        self.stamp(2)
        a('s_barrier')
        sk = self.lab('ofl')
        a(f's_cmp_lg_u32 s35, 7\ns_cbranch_scc1 {sk}')
        self.poll_flags([8], 12, sleep=12)
        a.label(sk)
        a('s_barrier')
        if o.get('ml_sent', 0):
            lp, done = self.lab('ml'), self.lab('mld')
            a(f's_mov_b32 s66, {self.tmo}')
            a.label(lp)
            a('buffer_load_dword v8, v4, s[40:43], s71 offen sc1')
            a('s_sub_u32 s66, s66, 1\ns_cmp_eq_u32 s66, 0\ns_waitcnt vmcnt(0)')
            a(f's_cbranch_scc1 {done}')
            a(f'v_cmp_eq_u32 vcc, -1, v8\ns_cbranch_vccz {done}')
            a(f's_sleep {o.get("ml_sleep", 2)}\ns_branch {lp}')
            a.label(done)
        self.stamp(7)

        def issue():
            a('buffer_load_dwordx2 v[8:9], v4, s[40:43], s71 offen sc1')
            for k in range(8):
                a(f'buffer_load_dwordx4 v[{G+4*k}:{G+4*k+3}], v5, s[40:43], s{72+k} offen sc1')
        self.poll_data(issue, [8, 9] + list(range(G, G + 32)), 10)
        self.stamp(8)
        a(f'v_max_f32_dpp v10, v8, v8 quad_perm:[1,0,3,2] {DPPM}')
        a(f'v_max_f32_dpp v10, v10, v10 quad_perm:[2,3,0,1] {DPPM}')
        a(f'v_max_f32_dpp v10, v10, v10 row_half_mirror {DPPM}')
        a('v_mov_b32 v11, v10\nv_permlane16_swap_b32 v10, v11\nv_max_f32 v10, v10, v11')
        a('v_mov_b32 v11, v10\nv_permlane32_swap_b32 v10, v11\nv_max_f32 v10, v10, v11')
        a('v_sub_f32 v8, v8, v10\nv_exp_f32 v8, v8')
        a(f'v_mov_b32_dpp v10, v8 quad_perm:[1,1,3,3] {DPPM}')
        a('v_cvt_pk_bf16_f32 v11, v8, v8')
        a('v_cvt_pk_bf16_f32 v10, v8, v10')
        a('v_lshlrev_b32 v11, 16, v11\nv_mul_f32 v9, v9, v11')
        lchain = [f'v_add_f32_dpp v9, v9, v9 quad_perm:[1,0,3,2] {DPPM}',
                  f'v_add_f32_dpp v9, v9, v9 quad_perm:[2,3,0,1] {DPPM}',
                  f'v_add_f32_dpp v9, v9, v9 row_half_mirror {DPPM}\nv_mov_b32 v11, v9',
                  'v_permlane16_swap_b32 v9, v11\nv_add_f32 v9, v9, v11\nv_mov_b32 v11, v9']
        for s in range(4):
            self.sfrag(12 + 4 * (s & 1), 10, bcast=2 * s)
            a(lchain[s])
            self.smf(24, 12 + 4 * (s & 1), G + 8 * s)
        a('v_permlane32_swap_b32 v9, v11\nv_add_f32 v9, v9, v11\nv_rcp_f32 v9, v9')
        for r in range(4):
            a(f'v_mul_f32 v{24+r}, v{24+r}, v9')
        a('v_cvt_pk_bf16_f32 v10, v24, v25\nv_cvt_pk_bf16_f32 v11, v26, v27')
        a('ds_write_b64 v7, v[10:11]')
        a('s_waitcnt lgkmcnt(0)\ns_barrier')
        self.stamp(9)
        a.label('L_H_join')
        a('s_barrier')
        self.r3_read_store(4, 's57', 237, 236)
        self.stamp(10)
        self.write_stamps()
        a('s_endpgm')

    def a_params(self):
        a = self.a
        a('s_sub_u32 s64, s37, 8\ns_and_b32 s39, s64, 1\ns_lshr_b32 s64, s64, 1\ns_lshl_b32 s38, s36, 3\ns_add_u32 s38, s38, s64')
        a(f's_mul_i32 s57, s38, {PSTR}\ns_lshl_b32 s64, s39, 14\ns_add_u32 s57, s57, s64\ns_add_u32 s57, s57, {WS_PART}')
        a(f's_lshl_b32 s58, s38, 8\ns_lshl_b32 s64, s39, 7\ns_add_u32 s58, s58, s64\ns_add_u32 s58, s58, {WS_ML}')

    def role_A(self):
        a, o = self.a, self.o
        SO, PV, BF, G, AS, AP = 32, 96, 160, 8, 224, 160
        QL = UP
        PB, MX = QL + 16640, MXB
        a.label('L_roleA')
        self.code_prefetch(0, 8)
        a('s_barrier\ns_barrier')
        self.late_common()
        a(f'v_lshlrev_b32 v4, 2, v1\nv_add_u32 v4, {MX}, v4\nv_mov_b32 v5, 0xff800000\nv_cmp_gt_u32 vcc, 16, v1\nv_cndmask_b32 v5, 0, v5, vcc')
        a('ds_write_b32 v4, v5')
        a('s_waitcnt lgkmcnt(0)')
        self.flag_regs()
        a.label('L_A_go')
        self.a_params()
        a('s_lshl_b32 s65, s39, 3\ns_and_b32 s66, s38, 7\n' + {0: 's_mov_b32 s65, s66', 1: 's_or_b32 s65, s65, s66', 2: 's_nop 0'}[o.get('ckv_rot', 1)])
        a('s_lshl_b32 s73, s65, 13\ns_lshl_b32 s66, s35, 10\ns_or_b32 s73, s73, s66')
        a('s_and_b32 s65, s65, 1\ns_lshl_b32 s65, s65, 1\ns_lshr_b32 s66, s35, 2\ns_or_b32 s65, s65, s66')
        a('s_and_b32 s64, s35, 3\ns_lshl_b32 s64, s64, 2\ns_or_b32 s64, s64, s65\ns_lshl_b32 s64, s64, 4')
        a('v_lshlrev_b32 v24, 4, v1\nv_xor_b32 v20, s64, v24\nv_xor_b32 v21, 32, v20')
        a('s_lshl_b32 s56, s38, 17')
        self.srd(52, 10, 2 * 4096 * 1024, 's56')
        for r in range(4):
            a(f'v_mov_b32 v{POI+r}, -1')
        a(f's_lshl_b32 s64, s39, 12\nv_and_b32 v29, 31, v1\nv_lshl_add_u32 v29, v29, 7, s64\ns_mov_b32 s77, {WS_FLAGS + FL_HF}')
        def pf_gu(first, n, wave0):
            if not n:
                return
            sk = self.lab('pfgu')
            a(f's_sub_u32 s64, s35, {wave0}\ns_cmp_ge_u32 s64, {n}\ns_cbranch_scc1 {sk}')
            a(f's_add_u32 s64, s64, {first}\ns_lshl_b32 s64, s64, 1\ns_sub_u32 s65, s37, 8\ns_mul_i32 s65, s65, 36\ns_add_u32 s64, s64, s65')
            a('v_lshrrev_b32 v30, 5, v1\nv_mad_u32_u24 v30, v30, 18, s64\nv_bfe_u32 v31, v1, 4, 1\nv_add_u32 v30, v30, v31\nv_mul_u32_u24 v30, 9216, v30')
            a('v_and_b32 v31, 7, v1\nv_lshl_add_u32 v30, v31, 7, v30\ns_lshl_b32 s64, s36, 10\nv_add_u32 v30, s64, v30')
            a('s_mov_b32 exec_lo, 0x00ff00ff\ns_mov_b32 exec_hi, 0x00ff00ff\nglobal_load_dword v230, v30, s[22:23]')
            a('s_not_b64 exec, exec\nglobal_load_dword v230, v30, s[24:25]')
            a('s_mov_b64 exec, -1')
            a.label(sk)
        a('v_and_b32 v5, 3, v3\nv_lshlrev_b32 v5, 2, v5\nv_lshrrev_b32 v6, 2, v3\nv_or_b32 v5, v5, v6')
        a('s_lshl_b32 s64, s35, 4\nv_add_u32 v6, s64, v3\nv_lshlrev_b32 v6, 10, v6\nv_lshl_add_u32 v6, v2, 8, v6')
        a('v_lshl_add_u32 v6, v5, 4, v6')
        a('v_lshrrev_b32 v8, 2, v3\nv_lshl_add_u32 v9, v2, 3, v8\nv_lshlrev_b32 v9, 10, v9')
        a('v_and_b32 v10, 1, v2\nv_lshlrev_b32 v10, 1, v10\nv_lshl_or_b32 v10, v8, 2, v10')
        a('v_bfe_u32 v11, v3, 1, 1\ns_lshl_b32 s64, s35, 3\nv_add_u32 v11, s64, v11')
        a('v_xor_b32 v10, v10, v11\nv_lshl_add_u32 v9, v10, 4, v9')
        a('v_and_b32 v10, 1, v3\nv_lshl_add_u32 v9, v10, 3, v9')
        a('v_xor_b32 v10, 16, v9\nv_add_u32 v10, 4096, v10')
        a('v_mov_b32 v26, v6\nv_mov_b32 v24, v9\nv_mov_b32 v25, v10')
        a(f's_lshr_b32 s64, s38, 5\ns_lshl_b32 s64, s64, 15\ns_lshl_b32 s65, s39, 14\ns_add_u32 s64, s64, s65\ns_add_u32 s78, s64, {WS_QA}')
        a('s_add_u32 s79, s78, 8192')
        a('v_lshlrev_b32 v4, 4, v0')
        a(f's_mul_i32 s64, s35, 1040\ns_add_u32 s64, s64, {QL}\nv_lshl_add_u32 v5, v1, 4, s64')
        a(f'v_mul_u32_u24 v6, 1040, v3\nv_lshl_add_u32 v6, v2, 8, v6\nv_add_u32 v6, {QL}, v6')
        a(f'v_lshlrev_b32 v7, 2, v3\nv_add_u32 v7, {MX}, v7')
        a(f'v_mul_u32_u24 v16, 288, v3\nv_add_u32 v16, {PB}, v16')
        a('s_lshl_b32 s64, s35, 5\nv_lshl_add_u32 v17, v2, 3, s64\nv_add_u32 v17, v17, v16')
        a('v_lshl_add_u32 v16, v2, 4, v16')
        a('v_lshlrev_b32 v18, 10, v3\nv_and_b32 v19, 1, v2\nv_lshl_add_u32 v18, v19, 5, v18')
        a('v_lshrrev_b32 v19, 1, v2\nv_lshl_add_u32 v18, v19, 4, v18\ns_lshl_b32 s64, s35, 7\nv_add_u32 v18, s64, v18')
        a(f'v_lshlrev_b32 v19, 3, v1\ns_mov_b32 s72, {hx(SCALE)}')

        def issue():
            a(f'buffer_load_dwordx4 v[{G}:{G+3}], v4, s[40:43], s78 offen sc1')
            a(f'buffer_load_dwordx4 v[{G+4}:{G+7}], v4, s[40:43], s79 offen sc1')
        a('s_sub_u32 s64, s37, 8\ns_mul_i32 s75, s64, 36864\ns_mul_i32 s65, s36, 589824\ns_add_u32 s75, s75, s65')
        a('s_mul_i32 s76, s64, 41472\ns_mul_i32 s65, s36, 663552\ns_add_u32 s76, s76, s65')
        a('v_min_u32 v22, 287, v0\nv_lshlrev_b32 v22, 7, v22\nv_add_u32 v22, s75, v22')
        a('v_min_u32 v23, 323, v0\nv_lshlrev_b32 v23, 7, v23\nv_add_u32 v23, s76, v23')
        sk = self.lab('ago')
        a(f's_cmp_eq_u32 s35, 0\ns_cbranch_scc1 {sk}')
        a(f'v_mov_b32 v251, {CNT}')
        self.hold(o.get('a_go', 5))
        a.label(sk)
        self.stamp(1)
        for k in range(16):
            a(f's_xor_b32 s74, s73, {k*8192}')
            a('s_mov_b32 m0, s74')
            a(f'buffer_load_dwordx4 v{20+(k&1)}, s[52:55], s74 offen {"nt" if o.get("ckv_nt") else ""} lds')
            if o.get('a_win') and k >= o['a_win'] and k < 15 and k < o['qa_at']:
                a(f's_waitcnt vmcnt({o["a_win"]})')
            if k == o['a_clr_at'] and not o.get('noclr'):
                a('s_add_u32 s64, s57, 8192')
                a(f'buffer_store_dwordx4 v[{POI}:{POI+3}], v4, s[40:43], s57 offen sc1')
                a(f'buffer_store_dwordx4 v[{POI}:{POI+3}], v4, s[40:43], s64 offen sc1')
                a('v_and_b32 v30, 0x70, v4')
                a(f'buffer_store_dwordx4 v[{POI}:{POI+3}], v30, s[40:43], s58 offen sc1')
            if k == o['gate_at']:
                sk = self.lab('gsig')
                a(f's_lshl_b32 s64, s39, 3\ns_add_u32 s64, s64, s35\ns_cmp_lg_u32 s64, 1\ns_cbranch_scc1 {sk}')
                a('v_mov_b32 v232, s60\nv_mov_b32 v233, s61\nv_mov_b32 v234, s62\nv_mov_b32 v235, s63')
                a(f's_lshl_b32 s64, s38, 7\ns_add_u32 s64, s64, {WS_FLAGS + FL_G}')
                a('s_mov_b64 exec, 1\nbuffer_store_dwordx4 v[232:235], v1, s[40:43], s64 offen sc1\ns_mov_b64 exec, -1')
                a.label(sk)
            if k == o['fl_at']:
                sk = self.lab('afl0')
                a(f's_cmp_lg_u32 s35, 0\ns_cbranch_scc1 {sk}')
                a('buffer_load_dwordx4 v[228:231], v29, s[40:43], s77 offen sc1')
                a.label(sk)
            if k == o['qa_at']:
                assert o['qa_at'] > o['fl_at'] >= o['a_clr_at']
                sk, sk2 = self.lab('akw'), self.lab('akw')
                a(f's_cmp_lg_u32 s35, 0\ns_cbranch_scc1 {sk2}')
                a(f's_waitcnt vmcnt({o["qa_at"] - o["fl_at"]})')
                for r in range(4):
                    a(f'v_xor_b32 v{228+r}, s{60+r}, v{228+r}')
                a(f'v_or3_b32 v228, v228, v229, v230\nv_or_b32 v228, v228, v231\nv_cmp_ne_u32 vcc, 0, v228\ns_cbranch_vccz {sk}')
                self.poll_flags([29], 228, sleep=8)
                a.label(sk)
                self.bump(1)
                a.label(sk2)
                self.hold(1, 1)
                issue()
        self.stamp(3)

        self.poll_data(issue, list(range(G, G + 8)), 20, first_issued=True, first_wait=15 - o['qa_at'])
        self.stamp(8)
        a(f'ds_write_b128 v5, v[{G}:{G+3}]')
        a(f'ds_write_b128 v5, v[{G+4}:{G+7}] offset:{8*1040}')
        a('s_waitcnt lgkmcnt(0)\ns_barrier')
        for s in range(16):
            a(f'ds_read_b128 v[{BF+4*s}:{BF+4*s+3}], v6 offset:{16*s}')
        for s in range(8):
            a(f'v_xor_b32 v{8+s}, {s*16}, v26')
        a('s_waitcnt vmcnt(0)\ns_barrier')
        self.stamp(7)
        for s in range(16):
            if s < 8:
                a(f'ds_read_b128 v[{SO+4*s}:{SO+4*s+3}], v{8+s}')
                a(f'v_xor_b32 v{8+s}, 128, v{8+s}')
            else:
                a(f'ds_read_b128 v[{SO+4*s}:{SO+4*s+3}], v{s}')
            if s == 3:
                if o['pf_wo']:
                    a('global_load_dword v228, v22, s[18:19]')
                sk = self.lab('afl')
                a(f's_cmp_lg_u32 s35, 7\ns_cbranch_scc1 {sk}')
                a('s_lshl_b32 s65, s39, 6\ns_add_u32 s65, s65, s38')
                self.flag_store(FL_A, 's65')
                a.label(sk)
            if s >= 6:
                a('s_waitcnt lgkmcnt(6)')
                self.mfma(AS, SO + 4 * (s - 6), BF + 4 * (s - 6), s == 6)
        trl = [(ct, hh, t) for ct in range(4) for hh in range(2) for t in range(4)]

        def tr(lst):
            for ct, hh, t in lst:
                if t == 0:
                    a(f'v_xor_b32 v27, {ct*32}, v{24+hh}\nv_add_u32 v28, 65536, v27')
                r = PV + 16 * ct + 4 * t + 2 * hh
                a(f'ds_read_b64_tr_b16 v[{r}:{r+1}], v{27 + (t>>1)} offset:{(t&1)*32768}')
        ntr = o.get('tr_s', 8)
        for s in range(10, 16):
            a(f's_waitcnt lgkmcnt({15 - s})')
            self.mfma(AS, SO + 4 * s, BF + 4 * s)
        tr(trl[:ntr])
        a(f'v_max3_f32 v8, v{AS}, v{AS+1}, v{AS+2}\nv_max_f32 v8, v8, v{AS+3}')
        a('ds_max_f32 v7, v8')
        a('s_waitcnt lgkmcnt(0)\ns_barrier')
        a('ds_read_b32 v8, v7')
        n2 = o.get('tr_m', 12)
        tr(trl[ntr:ntr + n2])
        a(f's_waitcnt lgkmcnt({n2})')
        a('v_mul_f32 v20, s72, v8')
        for r in range(4):
            a(f'v_fma_f32 v{AS+r}, v{AS+r}, s72, -v20')
        for r in range(4):
            a(f'v_exp_f32 v{AS+r}, v{AS+r}')
        a(f'v_cvt_pk_bf16_f32 v8, v{AS}, v{AS+1}\nv_cvt_pk_bf16_f32 v9, v{AS+2}, v{AS+3}')
        a('ds_write_b64 v17, v[8:9]')
        a(f'v_add_f32 v10, v{AS}, v{AS+1}\nv_add_f32 v11, v{AS+2}, v{AS+3}\nv_add_f32 v10, v10, v11')
        a('v_mul_f32 v10, 0x4b800000, v10\nv_cvt_u32_f32 v10, v10')
        a('ds_add_u32 v7, v10 offset:64')
        n3 = 32 - ntr - n2
        tr(trl[ntr + n2:])
        a(f's_waitcnt lgkmcnt({n3})\ns_barrier')
        for t in range(4):
            a(f'ds_read_b128 v[{SO+4*t}:{SO+4*t+3}], v16 offset:{64*t}')
        a('ds_read_b32 v21, v7 offset:64')
        for t in range(4):
            a(f's_waitcnt lgkmcnt({4-t})')
            for ct in range(4):
                self.mfma(AP + 4 * ct, PV + 16 * ct + 4 * t, SO + 4 * t, t == 0)
        sk = self.lab('aml')
        a(f's_cmp_lg_u32 s35, 0\ns_cbranch_scc1 {sk}')
        a('s_waitcnt lgkmcnt(0)')
        a('v_cvt_f32_u32 v21, v21\nv_mul_f32 v21, 0x33800000, v21')
        a('s_mov_b64 exec, 0xffff')
        a('buffer_store_dwordx2 v[20:21], v19, s[40:43], s58 offen sc1')
        a('s_mov_b64 exec, -1')
        a.label(sk)
        for p in range(2):
            for c2 in range(2):
                d = AP + 8 * p + 4 * c2
                a(f'v_cvt_pk_bf16_f32 v{8+4*p+2*c2}, v{d}, v{d+1}\nv_cvt_pk_bf16_f32 v{9+4*p+2*c2}, v{d+2}, v{d+3}')
        for p in range(2):
            a(f'v_permlane16_swap_b32 v{8+4*p}, v{10+4*p}\nv_permlane16_swap_b32 v{9+4*p}, v{11+4*p}')
            a(f'buffer_store_dwordx4 v[{8+4*p}:{11+4*p}], v18, s[40:43], s57 offen offset:{64*p} sc1')
        self.stamp(9)
        if o['pf_wd']:
            a('s_barrier')
            pf_gu(9 - o['w2'], o['w2'], 5)
            a('global_load_dword v229, v23, s[26:27]')
        fin_end = self.lab('finend')
        a(f's_sub_u32 s38, s2, {ID_A}\ns_cmp_ge_u32 s38, {NFIN}\ns_cbranch_scc1 {fin_end}')
        self.srd(48, 28, 2304)
        a('s_lshl_b32 s56, s38, 5\nv_lshlrev_b32 v6, 1, v3\nv_add_u32 v7, s56, v6')
        a('global_load_ushort v20, v7, s[8:9]')
        a('v_lshrrev_b32 v4, 2, v0\nv_mul_u32_u24 v4, 4608, v4\nv_and_b32 v5, 3, v0\nv_lshl_add_u32 v4, v5, 4, v4')
        a(f's_lshl_b32 s57, s38, 6\ns_add_u32 s57, s57, {WS_CP}')
        a(f'v_lshl_add_u32 v5, v5, 2, v2\nv_lshlrev_b32 v5, 5, v5\ns_lshl_b32 s64, s35, 2\nv_add_u32 v5, s64, v5')
        a('v_lshlrev_b32 v7, 5, v3')
        a(f'v_lshlrev_b32 v16, 7, v1\nv_add_u32 v17, 8192, v16')
        self.poll_flags([16, 17], 24, sleep=8)

        def issue2():
            a('buffer_load_dwordx4 v[8:11], v4, s[40:43], s57 offen sc1')
        self.poll_data(issue2, [8, 9, 10, 11], 12)
        for m in ('row_ror:4', 'row_ror:8'):
            for r in range(4):
                a(f'v_add_f32_dpp v{8+r}, v{8+r}, v{8+r} {m} {DPPM}')
        a('v_permlane16_swap_b32 v8, v9\nv_permlane16_swap_b32 v10, v11')
        a('v_add_f32 v8, v8, v9\nv_add_f32 v10, v10, v11')
        a('v_permlane32_swap_b32 v8, v10')
        a('v_add_f32 v8, v8, v10')
        a('ds_write_b32 v5, v8')
        a('s_waitcnt lgkmcnt(0)\ns_barrier')
        a(f's_cmp_lg_u32 s35, 0\ns_cbranch_scc1 {fin_end}')
        a('ds_read_b128 v[12:15], v7 offset:16\nds_read_b128 v[8:11], v7')
        a('v_lshlrev_b32 v20, 16, v20')
        a('s_waitcnt lgkmcnt(1)')
        a('v_pk_add_f32 v[12:13], v[12:13], v[14:15]\nv_add_f32 v12, v12, v13')
        a('v_cvt_pk_bf16_f32 v12, v12, v12\nv_lshlrev_b32 v12, 16, v12')
        a(f'v_mul_f32 v13, {hx(-math.log2(math.e))}, v12\nv_exp_f32 v13, v13')
        a('s_waitcnt lgkmcnt(0)')
        a('v_pk_add_f32 v[8:9], v[8:9], v[10:11]')
        a('v_add_f32 v13, 1.0, v13\nv_rcp_f32 v13, v13')
        a('v_add_f32 v8, v8, v9\nv_cvt_pk_bf16_f32 v8, v8, v8\nv_lshlrev_b32 v8, 16, v8')
        a('v_mul_f32 v12, v12, v13\nv_cvt_pk_bf16_f32 v12, v12, v12\nv_lshlrev_b32 v12, 16, v12')
        a('v_mul_f32 v8, v8, v12\nv_cvt_pk_bf16_f32 v8, v8, v8\nv_lshlrev_b32 v8, 16, v8')
        a('v_add_f32 v8, v8, v20\nv_cvt_pk_bf16_f32 v8, v8, v8')
        a('s_mov_b64 exec, 0xffff')
        a('buffer_store_short v8, v6, s[48:51], s56 offen')
        self.stamp(10)
        sk = self.lab('cep')
        a(f's_cmp_lg_u32 s38, 0\ns_cbranch_scc1 {sk}')
        a('s_mov_b64 exec, 1\nv_mov_b32 v8, s60')
        a(f'buffer_store_dword v8, v1, s[40:43], 0 offen offset:{WS_EPOCH}')
        a.label(sk)
        a('s_mov_b64 exec, -1')
        if self.o.get('spin'):
            sk2 = self.lab('spin')
            a(f's_cmp_lg_u32 s38, 0\ns_cbranch_scc1 {fin_end}')
            a('s_memrealtime s[92:93]\ns_waitcnt lgkmcnt(0)\ns_sub_u32 s94, s92, s90\ns_mul_i32 s94, s94, 10\ns_add_u32 s94, s94, s92')
            a.label(sk2)
            a(f's_memrealtime s[92:93]\ns_waitcnt lgkmcnt(0)\ns_cmp_lt_u32 s92, s94\ns_cbranch_scc1 {sk2}')
        a.label(fin_end)
        self.write_stamps()
        a('s_endpgm')

    def role_F(self):
        a, o = self.a, self.o
        W, AF, WD, WX, W8, XV, XV2 = 32, 104, 140, 180, 196, 188, 236
        ACC, ACC8 = 232, 228
        XN, HL, B8, R3 = 0, 4096, 8192, 16384
        a.label('L_roleF')
        self.hold(1)
        self.stat_read()
        a.label('L_F_go')
        a('s_setprio 0')
        a('s_sub_u32 s39, s37, 24\ns_lshl_b32 s38, s36, 3\ns_add_u32 s38, s38, s39')
        self.cp_row()
        a('v_lshrrev_b32 v4, 3, v3\nv_mul_u32_u24 v4, 1152, v4\ns_lshl_b32 s64, s39, 2\nv_add_u32 v7, s64, v2\nv_mad_u32_u24 v7, v7, 36, v4')
        a(f'global_load_dwordx4 v[{XV}:{XV+3}], v7, s[8:9]')
        a(f'global_load_dwordx2 v[{XV+4}:{XV+5}], v7, s[8:9] offset:16')
        a(f'global_load_dwordx3 v[{XV2}:{XV2+2}], v7, s[8:9] offset:24')
        a('v_lshrrev_b32 v4, 1, v2\nv_mul_u32_u24 v4, 18, v4\nv_and_b32 v5, 1, v2\nv_add_u32 v4, v4, v5')
        a('s_mul_i32 s64, s39, 72\ns_lshl_b32 s65, s35, 1\ns_add_u32 s64, s64, s65\nv_add_u32 v4, s64, v4\nv_mul_u32_u24 v4, 9216, v4')
        a('s_mul_i32 s64, s36, 1152\nv_add_u32 v4, s64, v4')
        a('s_lshl_b32 s64, s35, 4\nv_add_u32 v5, s64, v3\nv_cmp_lt_u32 vcc, 71, v5\nv_subrev_u32 v6, 72, v5\nv_cndmask_b32 v5, v5, v6, vcc')
        a('v_lshl_add_u32 v22, v5, 4, v4\nv_mov_b32 v23, 0')
        a('v_mov_b32 v20, s22\nv_mov_b32 v21, s24\nv_cndmask_b32 v20, v20, v21, vcc')
        a('v_mov_b32 v21, s23\nv_mov_b32 v6, s25\nv_cndmask_b32 v21, v21, v6, vcc')
        a('v_lshl_add_u64 v[22:23], v[22:23], 0, v[20:21]')
        a(f's_mov_b32 s70, {36*9216}\ns_mov_b32 s71, 0\nv_lshl_add_u64 v[24:25], v[22:23], 0, s[70:71]')
        a(f'v_lshl_add_u32 v4, v3, 4, v4\nv_add_u32 v4, {56*16}, v4\nv_add_u32 v5, {36*9216}, v4')
        sk = self.lab('fgo')
        a(f's_cmp_eq_u32 s35, 0\ns_cbranch_scc1 {sk}')
        if o['f_pre'] == 0:
            self.hold(5)
        a.label(sk)
        sk = self.lab('fb8')
        a(f's_cmp_lg_u32 s35, 0\ns_cbranch_scc1 {sk}')
        a(f'v_add_u32 v6, {16*9216}, v4\nglobal_load_dwordx4 v[{W8+8}:{W8+11}], v6, s[24:25] nt')
        a(f'v_add_u32 v6, {16*9216}, v5\nglobal_load_dwordx4 v[{W8+12}:{W8+15}], v6, s[24:25] nt')
        a.label(sk)
        a(f'global_load_dwordx4 v[{W8}:{W8+3}], v4, s[24:25] nt')
        a(f'global_load_dwordx4 v[{W8+4}:{W8+7}], v5, s[24:25] nt')
        a('s_mov_b32 s72, s35')

        def bulk(s0, s1):
            for s in range(s0, s1):
                for hf in range(2):
                    r = W + 8 * s + 4 * hf
                    a(f'global_load_dwordx4 v[{r}:{r+3}], v[{22+2*hf}:{23+2*hf}], off nt')
                if s < 8:
                    a(f's_cmp_eq_u32 s72, 8\ns_cselect_b32 s70, {(-18*9216) & 0xffffffff}, 0\ns_cselect_b32 s71, -1, 0\ns_cselect_b32 s72, -1, s72')
                    a(f's_add_u32 s70, s70, {2*9216}\ns_add_u32 s72, s72, 1')
                    for hf in range(2):
                        a(f'v_lshl_add_u64 v[{22+2*hf}:{23+2*hf}], v[{22+2*hf}:{23+2*hf}], 0, s[70:71]')
        nb = o.get('fp', 3)
        bulk(0, nb)
        self.stamp(1)
        a(f'v_lshrrev_b32 v6, 3, v3\nv_lshl_add_u32 v6, v6, 2, v2\nv_mul_u32_u24 v6, 72, v6\ns_mul_i32 s64, s35, 576\nv_add_u32 v6, s64, v6')
        a(f's_lshl_b32 s64, s35, 2\nv_add_u32 v7, s64, v6')
        a(f's_waitcnt vmcnt({2*nb + 2})')
        for k in range(9):
            xr = XV + k if k < 6 else XV2 + k - 6
            self.ln_pair(xr, xr)
            a(f'ds_write2_b32 v6, v{xr}, v{xr} offset0:{k} offset1:{k+9}')
        for k in range(4):
            a(f'ds_read2_b32 v[{8+2*k}:{9+2*k}], v7 offset0:{2*k} offset1:{2*k+1}')
        a('ds_read_b32 v16, v7 offset:32')
        for r in range(4):
            a(f'v_mov_b32 v{ACC+r}, 0\nv_mov_b32 v{ACC8+r}, 0')
        a('s_waitcnt lgkmcnt(0)')
        for k in range(9):
            self.sfrag(AF + 4 * k, 8 + k)
        a('v_lshrrev_b32 v6, 5, v1\nv_mul_u32_u24 v6, 4608, v6\nv_lshl_add_u32 v6, v3, 5, v6\nv_and_b32 v7, 1, v2\nv_lshl_add_u32 v6, v7, 4, v6')
        a(f's_mul_i32 s65, s38, 9216\ns_add_u32 s65, s65, {WS_LP}\ns_lshl_b32 s64, s35, 9\ns_add_u32 s58, s65, s64\ns_add_u32 s59, s65, 4096')
        a('s_and_b32 s74, s60, 0xfff\ns_xor_b32 s75, s74, 0xfff\ns_mov_b32 s76, 0xfff\nv_mov_b32 v18, s74\nv_mov_b32 v19, s75')
        a(f's_lshl_b32 s64, s35, 10\ns_add_u32 s64, s64, {B8}\nv_lshl_add_u32 v7, v1, 4, s64')
        a(f's_waitcnt vmcnt({2*nb})')
        self.smf(ACC8, AF, W8)
        sk = self.lab('fb8')
        a(f's_cmp_lg_u32 s35, 0\ns_cbranch_scc1 {sk}')
        self.smf(ACC8, AF + 32, W8 + 8)
        a.label(sk)
        a(f'ds_write_b128 v7, v[{ACC8}:{ACC8+3}]')
        if o.get('f_g'):
            self.gate('s39')
        self.stamp(2)
        bulk(nb, 9)
        a('s_waitcnt lgkmcnt(0)\ns_barrier')
        sk = self.lab('fb8')
        a(f's_cmp_lg_u32 s35, 0\ns_cbranch_scc1 {sk}')
        for p in range(8):
            a(f'ds_read_b128 v[{WD+4*p}:{WD+4*p+3}], v7 offset:{1024*p}')
        for p in range(1, 8):
            a(f's_waitcnt lgkmcnt({7-p})')
            a(f'v_pk_add_f32 v[{WD}:{WD+1}], v[{WD}:{WD+1}], v[{WD+4*p}:{WD+4*p+1}]')
            a(f'v_pk_add_f32 v[{WD+2}:{WD+3}], v[{WD+2}:{WD+3}], v[{WD+4*p+2}:{WD+4*p+3}]')
        for r in range(4):
            a(f'v_add_u32 v{ACC8+r}, 0x800, v{WD+r}\nv_bfi_b32 v{ACC8+r}, s76, v{18 + (r>>1)}, v{ACC8+r}')
        a.label(sk)
        a(f's_mul_i32 s64, s36, 576\ns_mul_i32 s65, s39, 72\ns_add_u32 s64, s64, s65\ns_mul_i32 s56, s64, 1152')
        self.srd(48, 26, 4608 * 1152, 's56')
        a('s_lshl_b32 s64, s35, 3\nv_add_u32 v4, s64, v2\nv_mul_u32_u24 v4, 1152, v4\nv_lshl_add_u32 v4, v3, 4, v4')
        a('s_min_u32 s73, s35, 4\ns_lshl_b32 s64, s73, 8')
        a(f'v_mul_u32_u24 v5, 1152, v2\nv_lshl_add_u32 v5, v3, 4, v5\nv_add_u32 v5, s64, v5\ns_mov_b32 s77, {4*1152}\ns_mov_b32 s78, {64*1152}\ns_mov_b32 s79, {68*1152}')
        wdl = [('x', 0), ('x', 1)] + [(cb, hf) for cb in range(5) for hf in range(2)]

        def wd_loads(lst):
            for cb, hf in lst:
                if cb == 'x':
                    a(f'buffer_load_dwordx4 v[{WX+4*hf}:{WX+4*hf+3}], v5, s[48:51], s{78+hf} offen')
                    continue
                if cb == 4 and hf == 0:
                    a('s_mov_b32 exec_lo, 0x00ff00ff\ns_mov_b32 exec_hi, 0x00ff00ff')
                r = WD + 8 * cb + 4 * hf
                a(f'buffer_load_dwordx4 v[{r}:{r+3}], v4, s[48:51], {"s77" if hf else "0"} offen offset:{256*cb}')
                if cb == 4 and hf == 1:
                    a('s_mov_b64 exec, -1')
        n1, n2 = o['wd_pre'], o.get('wd_mid', 4)
        wd_loads(wdl[:n1])
        self.stamp(7)
        for s in range(9):
            a(f's_waitcnt vmcnt({2*(8-s) + n1})')
            self.smf(ACC, AF + 4 * s, W + 8 * s)
        a('s_setprio 2')
        for r in range(4):
            a(f'v_add_u32 v{ACC+r}, 0x800, v{ACC+r}\nv_bfi_b32 v{ACC+r}, s76, v{18 + (r>>1)}, v{ACC+r}')
        a(f'buffer_store_dwordx4 v[{ACC}:{ACC+3}], v6, s[40:43], s58 offen sc1')
        sk = self.lab('fb8')
        a(f's_cmp_lg_u32 s35, 0\ns_cbranch_scc1 {sk}')
        a(f'buffer_store_dwordx4 v[{ACC8}:{ACC8+3}], v6, s[40:43], s59 offen sc1')
        a.label(sk)
        self.stamp(8)
        a('s_barrier')
        a('s_setprio 0')
        wd_loads(wdl[n1:n1 + n2])
        a('v_min_u32 v6, 287, v0\nv_lshrrev_b32 v7, 3, v6\nv_and_b32 v6, 7, v6\nv_mul_u32_u24 v26, 9216, v6')
        a(f'v_cmp_lt_u32 vcc, 17, v7\nv_cndmask_b32 v8, 0, 1, vcc\nv_mul_u32_u24 v9, {4608 - 18*16}, v8\nv_lshl_add_u32 v26, v7, 4, v26\nv_add_u32 v26, v26, v9')
        a(f's_mul_i32 s64, s36, {8*9216}\ns_mul_i32 s65, s39, 288\ns_add_u32 s64, s64, s65\ns_add_u32 s70, s64, {WS_LP}')
        a(f'v_and_b32 v9, 3, v6\nv_lshl_add_u32 v27, v7, 2, v9\nv_lshlrev_b32 v27, 1, v27\nv_add_u32 v27, {HL}, v27')
        a('v_cmp_eq_u32 s[64:65], 1, v9\nv_cmp_eq_u32 s[66:67], 2, v9\nv_cmp_eq_u32 s[68:69], 3, v9')
        a('s_mov_b64 s[4:5], s[64:65]\ns_mov_b64 s[6:7], s[66:67]')
        skg = self.lab('fnog')
        a(f's_cmp_gt_u32 s35, 4\ns_cbranch_scc1 {skg}')
        a(f'buffer_load_dwordx4 v[8:11], v26, s[40:43], s70 offen sc1')
        a(f'buffer_load_dwordx4 v[12:15], v26, s[40:43], s70 offen offset:2304 sc1')
        a.label(skg)
        wd_loads(wdl[n1 + n2:])
        n3 = 12 - n1 - n2
        a(f'v_lshrrev_b32 v4, 3, v3\nv_mul_u32_u24 v4, 144, v4\nv_lshl_add_u32 v4, v2, 2, v4\nv_add_u32 v4, {HL}, v4\ns_lshl_b32 s64, s35, 4\nv_add_u32 v17, s64, v4')
        a(f's_mul_i32 s64, s35, 4608\ns_add_u32 s64, s64, {R3}')
        self.r3_waddr(5, 7, 's64')
        a(f's_lshl_b32 s64, s73, 9\ns_add_u32 s64, s64, {R3 + 8*4608}')
        self.r3_waddr(6, 7, 's64')
        a(f'v_lshlrev_b32 v236, 4, v0\nv_add_u32 v237, {R3}, v236')
        O = 32
        for r in range(24):
            a(f'v_mov_b32 v{O+r}, 0')
        skg = self.lab('fnog')
        a(f's_cmp_gt_u32 s35, 4\ns_cbranch_scc1 {skg}')
        lp, done = self.lab('lp'), self.lab('lpd')
        a(f's_setprio 2\ns_waitcnt vmcnt({n3})\ns_mov_b32 s66, {self.tmo}')
        a.label(lp)
        for r in range(8):
            a(f'v_xor_b32 v{56+r}, s{74 + ((r>>1)&1)}, v{8+r}')
        a('v_or3_b32 v56, v56, v57, v58\nv_or3_b32 v59, v59, v60, v61\nv_or3_b32 v56, v56, v62, v63\nv_or_b32 v56, v56, v59\nv_and_b32 v56, 0xfff, v56')
        a(f'v_cmp_ne_u32 vcc, 0, v56\ns_cbranch_vccz {done}')
        a('s_sleep 2')
        a(f'buffer_load_dwordx4 v[8:11], v26, s[40:43], s70 offen sc1')
        a(f'buffer_load_dwordx4 v[12:15], v26, s[40:43], s70 offen offset:2304 sc1')
        a(f's_sub_u32 s66, s66, 1\ns_cmp_lg_u32 s66, 0\ns_waitcnt vmcnt(0)\ns_cbranch_scc1 {lp}')
        a.label(done)
        for r in range(8):
            a(f'v_and_b32 v{8+r}, 0xfffff000, v{8+r}')
        for m in ('quad_perm:[1,0,3,2]', 'quad_perm:[2,3,0,1]', 'row_half_mirror'):
            for r in range(8):
                a(f'v_add_f32_dpp v{8+r}, v{8+r}, v{8+r} {m} {DPPM}')
        for base in (8, 12):
            a(f'v_cndmask_b32 v{base}, v{base}, v{base+1}, s[4:5]\nv_cndmask_b32 v{base}, v{base}, v{base+2}, s[6:7]\nv_cndmask_b32 v{base}, v{base}, v{base+3}, s[68:69]')
        k1 = hx(0.044715)
        k2 = hx(-2.0 * math.sqrt(2.0 / math.pi) * math.log2(math.e))
        a('v_cvt_pk_bf16_f32 v9, v8, v12\nv_lshlrev_b32 v8, 16, v9\nv_and_b32 v12, 0xffff0000, v9')
        a(f'v_mul_f32 v9, v8, v8\nv_mul_f32 v9, {k1}, v9\nv_fma_f32 v9, v9, v8, v8\nv_mul_f32 v9, {k2}, v9')
        a('v_exp_f32 v9, v9\nv_add_f32 v9, 1.0, v9\nv_rcp_f32 v9, v9\nv_mul_f32 v8, v8, v9')
        a('v_cvt_pk_bf16_f32 v8, v8, v8\nv_lshlrev_b32 v8, 16, v8\nv_mul_f32 v8, v8, v12\nv_cvt_pk_bf16_f32 v8, v8, v8')
        a('s_cmp_eq_u32 s35, 4\ns_cselect_b32 exec_hi, 0, -1\nds_write_b16 v27, v8\ns_mov_b64 exec, -1')
        a.label(skg)
        a('s_setprio 2\ns_waitcnt lgkmcnt(0)\ns_barrier')
        a('ds_read_b32 v8, v17\nds_read_b32 v9, v4 offset:128')
        a('s_waitcnt lgkmcnt(1)')
        self.sfrag(12, 8)
        a('s_waitcnt lgkmcnt(0)')
        self.sfrag(16, 9)
        a('s_waitcnt vmcnt(0)')
        for cb in range(5):
            self.smf(O + 4 * cb, 12, WD + 8 * cb)
        self.smf(O + 20, 16, WX)
        self.stamp(9)
        for cb in range(4):
            a(f'ds_write_b128 v5, v[{O+4*cb}:{O+4*cb+3}] offset:{cb*512}')
        sk = self.lab('fx')
        a(f's_cmp_gt_u32 s35, 3\ns_cbranch_scc1 {sk}')
        a(f'ds_write_b128 v6, v[{O+20}:{O+23}]')
        a.label(sk)
        a('s_mov_b32 exec_lo, 0x00ff00ff\ns_mov_b32 exec_hi, 0x00ff00ff')
        a(f'ds_write_b128 v5, v[{O+16}:{O+19}] offset:2048')
        sk = self.lab('fx')
        a(f's_cmp_lg_u32 s35, 4\ns_cbranch_scc1 {sk}')
        a(f'ds_write_b128 v6, v[{O+20}:{O+23}]')
        a.label(sk)
        a('s_mov_b64 exec, -1')
        a('s_waitcnt lgkmcnt(0)\ns_barrier')
        self.r3_read_store(9, 's57', 237, 236)
        self.stamp(10)
        self.write_stamps()

    def build(self):
        a = self.a
        a.raw(f'; @launch grid=(256,1,1) block=(512,1,1) lds={LDS_BYTES}')
        a.raw('.amdgcn_target "amdgcn-amd-amdhsa--gfx950"')
        a.raw(f'.text\n.globl {KN}\n.p2align 8\n.type {KN},@function\n{KN}:')
        if self.o.get('spin'):
            a('s_memrealtime s[90:91]')
        self.prologue()
        self.role_H()
        self.role_A()
        self.role_F()
        a.label('L_end')
        a('s_endpgm')
        a.raw('.section .rodata,"a"\n.p2align 6')
        a.raw(f'.amdhsa_kernel {KN}')
        a.raw('  .amdhsa_next_free_vgpr 256\n  .amdhsa_next_free_sgpr 102\n  .amdhsa_accum_offset 256')
        a.raw('  .amdhsa_group_segment_fixed_size 0\n  .amdhsa_kernarg_size 104\n  .amdhsa_user_sgpr_count 2')
        a.raw('  .amdhsa_user_sgpr_kernarg_segment_ptr 1\n  .amdhsa_system_sgpr_workgroup_id_x 1')
        a.raw('  .amdhsa_float_denorm_mode_32 3')
        a.raw('.end_amdhsa_kernel')
        return a.text()


if __name__ == '__main__':
    stamps = '--stamps' in sys.argv
    opt = {}
    for x in sys.argv[1:]:
        if '=' in x:
            k, v = x.lstrip('-').split('=')
            opt[k] = int(v)
    out = [x for x in sys.argv[1:] if not x.startswith('--') and '=' not in x]
    t = Gen(stamps, opt).build()
    if out:
        open(out[0], 'w').write(t)
    else:
        sys.stdout.write(t)
```

```python
import sys, math, struct
from asmlib import Asm

KN = 'recurrent_scan__compressed_kv_cla__geglu_ffn__decode_kernel'

WS_EPOCH = 0
WS_FLAGS = 0x1000
FL_HF, FL_A, FL_G = 0, 0x4000, 0x8000
WS_QA = 0x20000
WS_ML = 0x30000
WS_LP = 0x500000
WS_CP = 0x50000
WS_PART = 0x100000
PSTR = 32768 + 512
WS_QP = 0x340000
WS_DX = 0x3A0000
WS_STAMP = 0x400000
WS_SIZE = 0x10000000
LDS_BYTES = 163840
TIMEOUT = 1 << 21
ID_A, ID_F, NFIN = 64, 192, 72
SCALE = 128 ** -0.5 * math.log2(math.e)

MM, SM, IDX, MEAN, RDEN = 240, 244, 248, 249, 250
SLO, SHI = 238, 239
MW, MA, MACC, MT = 196, 220, 232, 28
UP = 131072
UKB, QL2, MBUF, CNT, MXB, STAT = 65536, UP + 16384, UP + 20992, UP + 29184, UP + 29440, UP + 29696
XM = 240
POI = 252
DPPM = 'row_mask:0xf bank_mask:0xf'


def f2u(x):
    return struct.unpack('<I', struct.pack('<f', x))[0]


def hx(x):
    return hex(f2u(x))


class Gen:
    def __init__(self, stamps=False, opt=None):
        self.a = Asm()
        self.stamps = stamps
        self.uid = 0
        self.o = dict(f_pf=1, f_pf2=2, lg_nt=0, w1a=1, w1b=0, w1c=0, y_first=0, tr_pre=0, tr_s=8, tr_m=12, pf_code=1, clr_nt=1, keys_first=0, pf_uk=1, uk_pre=6, uv_e1=0, uv_e2=0, uv_win=1, clr_early=1, w1_early=0, a_clr_at=4, wo_pre=3, pf_wo=1, pf_wd=1, w0=0, w2=0, qp_sleep=4, gate_at=99, h_g=0, h_pre=2, fl_at=8, qa_at=12, f_pre=0, wd_pre=2, wd_mid=6)
        if opt:
            self.o.update(opt)
        self.tmo = self.o.get('tmo', TIMEOUT)

    def lab(self, p):
        self.uid += 1
        return f'L_{p}_{self.uid}'

    def stamp(self, k, late=False):
        if self.stamps and not (late and self.o.get('dbg_a')):
            assert k <= 10
            self.a(f's_memrealtime s[{80+2*k}:{81+2*k}]')

    def write_stamps(self, n=11):
        if not self.stamps:
            return
        a = self.a
        a('s_waitcnt lgkmcnt(0)')
        a('s_mov_b64 exec, 1')
        a(f's_lshl_b32 s64, s2, 3\ns_add_u32 s64, s64, s35\ns_lshl_b32 s64, s64, 6\ns_add_u32 s64, s64, {WS_STAMP}')
        a('v_mov_b32 v4, 0')
        for k in range(n):
            a(f'v_mov_b32 v5, s{80+2*k}')
            a(f'buffer_store_dword v5, v4, s[40:43], s64 offen offset:{4*k}')
        a('s_mov_b64 exec, -1')

    def srd(self, s, lo, size, add=None):
        a = self.a
        if add is None:
            a(f's_mov_b32 s{s}, s{lo}\ns_mov_b32 s{s+1}, s{lo+1}\ns_mov_b32 s{s+2}, {size}')
        else:
            a(f's_add_u32 s{s}, s{lo}, {add}\ns_addc_u32 s{s+1}, s{lo+1}, 0\ns_sub_u32 s{s+2}, {size}, {add}')
        a(f's_mov_b32 s{s+3}, 0x20000')

    def masks_mfma(self):
        a = self.a
        a(f'v_and_b32 v{MT}, 1, v3\nv_lshlrev_b32 v{MT}, 4, v{MT}')
        a(f'v_mov_b32 v{MT+1}, 0xffff\nv_lshlrev_b32 v{MT}, v{MT}, v{MT+1}')
        a(f'v_bfe_u32 v{MT+1}, v3, 1, 2')
        for r in range(4):
            a(f'v_cmp_eq_u32 vcc, {r}, v{MT+1}')
            a(f'v_cndmask_b32 v{MM+r}, 0, v{MT}, vcc')

    def masks_smf(self):
        a = self.a
        a(f'v_and_b32 v{MT}, 4, v3\nv_cmp_eq_u32 vcc, 0, v{MT}')
        a(f'v_mov_b32 v{MT}, 0xffff')
        a(f'v_cndmask_b32 v{SM}, 0, v{MT}, vcc')
        a(f'v_xor_b32 v{SM+1}, v{SM}, v{MT}')
        a(f'v_lshlrev_b32 v{SM+2}, 16, v{SM}\nv_lshlrev_b32 v{SM+3}, 16, v{SM+1}')
        a(f'v_and_b32 v{IDX}, 3, v3\nv_mul_u32_u24 v{IDX}, 0x5555, v{IDX}')

    def sfrag(self, dst, src, bcast=None):
        for r in range(4):
            if bcast is None:
                self.a(f'v_and_b32 v{dst+r}, v{src}, v{SM+r}')
            else:
                self.a(f'v_and_b32_dpp v{dst+r}, v{src}, v{SM+r} row_newbcast:{bcast} {DPPM}')

    def smf(self, acc, af, b):
        self.a(f'v_smfmac_f32_16x16x64_bf16 v[{acc}:{acc+3}], v[{af}:{af+3}], v[{b}:{b+7}], v{IDX}')

    def mfma(self, acc, af, b, first=False):
        c = '0' if first else f'v[{acc}:{acc+3}]'
        self.a(f'v_mfma_f32_16x16x32_bf16 v[{acc}:{acc+3}], v[{af}:{af+3}], v[{b}:{b+3}], {c}')

    def flag_regs(self):
        a = self.a
        a('s_add_u32 s60, s34, 0x9E3779B9')
        a('s_mul_i32 s61, s60, 0x85EBCA6B')
        a('s_not_b32 s62, s60')
        a('s_xor_b32 s63, s60, 0x5A5AA5A5')

    def flag_store(self, off, idx, setregs=True):
        a = self.a
        if setregs:
            a(f'v_mov_b32 v{POI}, s60\nv_mov_b32 v{POI+1}, s61\nv_mov_b32 v{POI+2}, s62\nv_mov_b32 v{POI+3}, s63')
        a(f's_lshl_b32 s64, {idx}, 7\ns_add_u32 s64, s64, {WS_FLAGS + off}')
        a('s_mov_b64 exec, 1')
        a(f'buffer_store_dwordx4 v[{POI}:{POI+3}], v1, s[40:43], s64 offen sc1')
        a('s_mov_b64 exec, -1')

    def poll_flags(self, vaddrs, vt, sleep=2, first_issued=False):
        a = self.a
        lp, done = self.lab('fl'), self.lab('fld')
        a(f's_mov_b32 s66, {self.tmo}\ns_mov_b32 s64, {WS_FLAGS}')
        if first_issued:
            mid = self.lab('flm')
            a(f's_branch {mid}')
        a.label(lp)
        for i, va in enumerate(vaddrs):
            a(f'buffer_load_dwordx4 v[{vt+4*i}:{vt+4*i+3}], v{va}, s[40:43], s64 offen sc1')
        if first_issued:
            a.label(mid)
        a('s_waitcnt vmcnt(0)')
        for i in range(len(vaddrs)):
            t = vt + 4 * i
            for r in range(4):
                a(f'v_xor_b32 v{t+r}, s{60+r}, v{t+r}')
            a(f'v_or3_b32 v{t}, v{t}, v{t+1}, v{t+2}')
            if i == 0:
                a(f'v_or_b32 v{vt}, v{t}, v{t+3}')
            else:
                a(f'v_or3_b32 v{vt}, v{vt}, v{t}, v{t+3}')
        a(f'v_cmp_ne_u32 vcc, 0, v{vt}')
        a(f's_cbranch_vccz {done}')
        a(f's_sleep {sleep}')
        a('s_sub_u32 s66, s66, 1\ns_cmp_lg_u32 s66, 0')
        a(f's_cbranch_scc1 {lp}')
        a.label(done)

    def poll_data(self, issue, dwords, vt, first_issued=False, first_wait=0):
        a = self.a
        lp, done = self.lab('pd'), self.lab('pdd')
        a(f's_mov_b32 s66, {self.tmo}')
        if first_issued:
            mid = self.lab('pdm')
            a(f's_waitcnt vmcnt({first_wait})\ns_branch {mid}')
        a.label(lp)
        issue()
        a('s_sub_u32 s66, s66, 1\ns_cmp_eq_u32 s66, 0')
        a('s_waitcnt vmcnt(0)')
        a(f's_cbranch_scc1 {done}')
        if first_issued:
            a.label(mid)
        d = list(dwords)
        a(f'v_max3_u32 v{vt}, v{d[0]}, v{d[1]}, v{d[2]}')
        d = d[3:]
        while len(d) >= 2:
            a(f'v_max3_u32 v{vt}, v{vt}, v{d[0]}, v{d[1]}')
            d = d[2:]
        if d:
            a(f'v_max_u32 v{vt}, v{vt}, v{d[0]}')
        a(f'v_cmp_eq_u32 vcc, -1, v{vt}')
        a(f's_cbranch_vccnz {lp}')
        a.label(done)

    def x_stat_addr(self):
        a = self.a
        a('v_lshrrev_b32 v4, 3, v3\nv_mul_u32_u24 v4, 1152, v4')
        a('v_and_b32 v6, 7, v3\nv_lshl_add_u32 v6, v2, 3, v6')
        a('v_lshl_add_u32 v5, v6, 4, v4\nv_lshl_add_u32 v6, v6, 2, v4')

    def x_stat_loads(self):
        a = self.a
        a('global_load_dwordx4 v[8:11], v5, s[8:9]')
        a('global_load_dwordx4 v[12:15], v5, s[8:9] offset:512')
        a('global_load_dword v16, v6, s[8:9] offset:1024')

    def ln_stats(self):
        a = self.a
        S, Q, T = MT, MT + 1, MT + 2
        a(f'v_mov_b32 v{S}, 0\nv_mov_b32 v{Q}, 0\ns_mov_b32 s64, 0x3f803f80')
        for k in range(9):
            a(f'v_dot2c_f32_bf16 v{S}, s64, v{8+k}')
            a(f'v_dot2c_f32_bf16 v{Q}, v{8+k}, v{8+k}')
        for m in ('quad_perm:[1,0,3,2]', 'quad_perm:[2,3,0,1]', 'row_half_mirror'):
            a(f'v_add_f32_dpp v{S}, v{S}, v{S} {m} {DPPM}')
            a(f'v_add_f32_dpp v{Q}, v{Q}, v{Q} {m} {DPPM}')
        a(f'v_permlane16_swap_b32 v{S}, v{Q}')
        a(f'v_add_f32 v{S}, v{S}, v{Q}')
        a(f'v_mov_b32 v{Q}, v{S}')
        a(f'v_permlane32_swap_b32 v{S}, v{Q}')
        a(f'v_add_f32 v{S}, v{S}, v{Q}')
        a(f'v_mul_f32 v{S}, {hx(1.0/576)}, v{S}')
        a(f'v_mov_b32 v{Q}, v{S}')
        a(f'v_permlane16_swap_b32 v{S}, v{Q}')
        a(f'v_fma_f32 v{Q}, -v{S}, v{S}, v{Q}')
        a(f'v_max_f32 v{Q}, 0, v{Q}')
        a(f'v_cvt_pk_bf16_f32 v{T}, v{S}, v{Q}')
        a(f'v_lshlrev_b32 v{MEAN}, 16, v{T}')
        a(f'v_and_b32 v{Q}, 0xffff0000, v{T}')
        a(f'v_add_f32 v{Q}, {hx(1e-5)}, v{Q}')
        a(f'v_cvt_pk_bf16_f32 v{Q}, v{Q}, v{Q}')
        a(f'v_lshlrev_b32 v{Q}, 16, v{Q}')
        a(f'v_sqrt_f32 v{Q}, v{Q}')
        a(f'v_cvt_pk_bf16_f32 v{Q}, v{Q}, v{Q}')
        a(f'v_lshlrev_b32 v{Q}, 16, v{Q}')
        a(f'v_rcp_f32 v{RDEN}, v{Q}')

    def ln_pair(self, src, dst):
        a, T = self.a, 26
        a(f'v_lshlrev_b32 v{T}, 16, v{src}\nv_and_b32 v{T+1}, 0xffff0000, v{src}')
        a(f'v_sub_f32 v{T}, v{T}, v{MEAN}\nv_sub_f32 v{T+1}, v{T+1}, v{MEAN}')
        a(f'v_cvt_pk_bf16_f32 v{dst}, v{T}, v{T+1}')
        a(f'v_lshlrev_b32 v{T}, 16, v{dst}\nv_and_b32 v{T+1}, 0xffff0000, v{dst}')
        a(f'v_mul_f32 v{T}, v{T}, v{RDEN}\nv_mul_f32 v{T+1}, v{T+1}, v{RDEN}')
        a(f'v_cvt_pk_bf16_f32 v{dst}, v{T}, v{T+1}')

    def mini_addr(self, MB):
        a = self.a
        a('v_lshrrev_b32 v6, 5, v1\nv_lshlrev_b32 v6, 9, v6\nv_lshl_add_u32 v6, v3, 5, v6')
        a('v_and_b32 v7, 1, v2\nv_lshl_add_u32 v6, v7, 4, v6')
        a(f's_lshl_b32 s64, s35, 10\ns_add_u32 s64, s64, {MB}\nv_add_u32 v6, s64, v6')
        a(f'v_lshl_add_u32 v7, v1, 4, s64')
        for r in range(4):
            a(f'v_mov_b32 v{MACC+r}, 0')

    def mini_mma(self, nafter=0, wait=True):
        a = self.a
        for s in range(3):
            self.ln_pair(XM + s, XM + s)
            self.sfrag(MA + 4 * s, XM + s)
        for s in range(3):
            a(f's_waitcnt vmcnt({nafter + 4 - 2*s})')
            self.smf(MACC, MA + 4 * s, MW + 8 * s)
        a(f'ds_write_b128 v6, v[{MACC}:{MACC+3}]')
        if wait:
            a('s_waitcnt lgkmcnt(0)')

    def mini_reduce(self, nparts):
        a = self.a
        for p in range(nparts):
            a(f'ds_read_b128 v[{MW+4*p}:{MW+4*p+3}], v7 offset:{1024*p}')
        for p in range(1, nparts):
            a(f's_waitcnt lgkmcnt({nparts-1-p})')
            a(f'v_pk_add_f32 v[{MW}:{MW+1}], v[{MW}:{MW+1}], v[{MW+4*p}:{MW+4*p+1}]')
            a(f'v_pk_add_f32 v[{MW+2}:{MW+3}], v[{MW+2}:{MW+3}], v[{MW+4*p+2}:{MW+4*p+3}]')

    def q_ids(self):
        a = self.a
        a('s_cmp_ge_u32 s37, 24\ns_cselect_b32 s64, 16, 0\ns_sub_u32 s77, s37, s64')
        a('s_lshr_b32 s70, s77, 2\ns_lshl_b32 s64, s36, 2\ns_add_u32 s70, s70, s64\ns_and_b32 s71, s77, 3')

    def q1_phase(self):
        a = self.a
        self.x_stat_addr()
        a('s_and_b32 s70, s2, 31\ns_lshr_b32 s71, s2, 5')
        a('s_mul_i32 s64, s71, 72\ns_mul_i32 s65, s35, 24\ns_add_u32 s65, s64, s65')
        a('v_mad_u32_u24 v7, v2, 6, s65\nv_lshl_add_u32 v7, v7, 1, v4')
        a('v_lshrrev_b32 v20, 1, v2\nv_mad_u32_u24 v20, v20, 6, s65\nv_and_b32 v21, 1, v2\nv_add_u32 v20, v20, v21')
        a('s_lshl_b32 s64, s70, 8\nv_lshlrev_b32 v20, 13, v20\nv_lshl_add_u32 v20, v3, 4, v20\nv_add_u32 v20, s64, v20')
        for k in range(1, 6):
            a(f'v_add_u32 v{20+k}, {(12*(k&1) + 2*(k>>1))*8192}, v20')
        a(f'v_mov_b32 v251, {CNT}\nv_mov_b32 v27, 0')
        a(f'v_and_b32 v26, 7, v1\nv_lshl_add_u32 v26, v26, 2, v251\nds_write_b32 v26, v27')
        a('s_waitcnt lgkmcnt(0)')
        self.x_stat_loads()
        a(f'global_load_dwordx3 v[{XM}:{XM+2}], v7, s[8:9]')
        a('s_barrier')
        for k in range(6):
            a(f'global_load_dwordx4 v[{MW+4*k}:{MW+4*k+3}], v{20+k}, s[12:13] nt')
        a('s_barrier')
        self.stamp(1)
        a(f's_load_dword s34, s[32:33], {WS_EPOCH}')
        self.srd(40, 32, WS_SIZE)
        self.masks_smf()
        self.mini_addr(MBUF)
        a('s_and_b32 s64, s71, 3\ns_lshr_b32 s65, s71, 2\ns_lshl_b32 s65, s65, 3\ns_or_b32 s64, s64, s65\ns_lshl_b32 s64, s64, 9')
        a(f's_lshl_b32 s65, s70, 13\ns_add_u32 s64, s64, s65\ns_add_u32 s72, s64, {WS_QP}')
        a(f'v_mov_b32 v{SLO}, 0x05040100\nv_mov_b32 v{SHI}, 0x07060302')
        a('v_lshrrev_b32 v5, 5, v1\nv_lshlrev_b32 v5, 11, v5\nv_and_b32 v4, 31, v1\nv_lshl_add_u32 v5, v4, 4, v5')
        a('s_waitcnt vmcnt(7)')
        self.ln_stats()
        a(f'v_lshlrev_b32 v4, 3, v1\nv_add_u32 v4, {STAT}, v4')
        a('s_waitcnt vmcnt(6) lgkmcnt(0)')
        a(f'ds_write2_b32 v4, v{MEAN}, v{RDEN} offset1:1')
        self.flag_regs()
        self.mini_mma(wait=False)
        self.bump()
        self.stamp(2)
        sk = self.lab('q1pub')
        a(f's_cmp_lg_u32 s35, 0\ns_cbranch_scc1 {sk}')
        self.hold(3, sleep=0)
        self.mini_reduce(3)
        a(f'v_cvt_pk_bf16_f32 v{MW+4}, v{MW}, v{MW+1}\nv_cvt_pk_bf16_f32 v{MW+5}, v{MW+2}, v{MW+3}')
        a(f'v_perm_b32 v{MW}, v{MW+4}, s60, v{SLO}\nv_perm_b32 v{MW+1}, v{MW+4}, s60, v{SHI}')
        a(f'v_perm_b32 v{MW+2}, v{MW+5}, s61, v{SLO}\nv_perm_b32 v{MW+3}, v{MW+5}, s61, v{SHI}')
        a(f'buffer_store_dwordx4 v[{MW}:{MW+3}], v5, s[40:43], s72 offen sc1')
        self.bump()
        a.label(sk)

    def code_prefetch(self, first_wave, nw):
        a = self.a
        ref = self.lab('pcref')
        a('s_getpc_b64 s[4:5]')
        a.label(ref)
        a(f's_sub_u32 s4, s4, {ref}-{KN}\ns_subb_u32 s5, s5, 0')
        a(f's_sub_u32 s64, s37, 8\ns_lshl_b32 s64, s64, 2\ns_and_b32 s65, s35, 3\ns_add_u32 s64, s64, s65\ns_lshl_b32 s64, s64, 7')
        a(f'v_lshlrev_b32 v4, 13, v2\nv_add_u32 v4, s64, v4\nv_min_u32 v4, L_end-{KN}, v4')
        a('global_load_dword v195, v4, s[4:5]')

    def bump(self, c=0):
        a = self.a
        a('v_mov_b32 v31, 1\ns_mov_b64 exec, 1')
        a(f'ds_add_u32 v251, v31 offset:{4*c}')
        a('s_mov_b64 exec, -1')

    def late_common(self):
        a = self.a
        a('s_waitcnt lgkmcnt(0)')
        a(f's_load_dword s34, s[32:33], {WS_EPOCH}')
        self.srd(40, 32, WS_SIZE)
        for r in range(4):
            a(f'v_mov_b32 v{POI+r}, -1')

    def r3_read_store(self, nparts, rowreg, vaddr, vgaddr):
        a = self.a
        skip = self.lab('fr')
        a(f's_cmp_gt_u32 s35, 4\ns_cbranch_scc1 {skip}')
        a('s_cmp_eq_u32 s35, 4\ns_cselect_b32 exec_hi, 0, -1')
        for w in range(nparts):
            a(f'ds_read_b128 v[{32+4*w}:{35+4*w}], v{vaddr} offset:{w*4608}')
        for w in range(1, nparts):
            a(f's_waitcnt lgkmcnt({nparts-1-w})')
            a(f'v_pk_add_f32 v[32:33], v[32:33], v[{32+4*w}:{33+4*w}]')
            a(f'v_pk_add_f32 v[34:35], v[34:35], v[{34+4*w}:{35+4*w}]')
        for r in range(4):
            a(f'v_add_u32 v{32+r}, 0x800, v{32+r}\nv_bfi_b32 v{32+r}, s76, v{18 + (r>>1)}, v{32+r}')
        a(f'buffer_store_dwordx4 v[32:35], v{vgaddr}, s[40:43], {rowreg} offen sc1')
        a('s_mov_b64 exec, -1')
        a.label(skip)

    def r3_waddr(self, dst, tmp, base_sreg):
        a = self.a
        a(f'v_lshrrev_b32 v{dst}, 5, v1\nv_mul_u32_u24 v{dst}, 2304, v{dst}\nv_lshl_add_u32 v{dst}, v3, 5, v{dst}')
        a(f'v_and_b32 v{tmp}, 1, v2\nv_lshl_add_u32 v{dst}, v{tmp}, 4, v{dst}\nv_add_u32 v{dst}, {base_sreg}, v{dst}')

    def prologue(self):
        a = self.a
        if self.stamps:
            for k in range(1, 11):
                a(f's_mov_b32 s{80+2*k}, 0')
        self.stamp(0)
        a('s_cmp_ge_u32 s2, 256\ns_cbranch_scc1 L_end')
        a('s_load_dwordx16 s[8:23], s[0:1], 0')
        a('v_lshrrev_b32 v2, 6, v0')
        a('v_and_b32 v1, 63, v0')
        if self.o['pf_code']:
            a('s_getpc_b64 s[4:5]')
            a.label('L_pc0')
            a('s_and_b32 s64, s2, 24\nv_add_u32 v4, s64, v2\nv_min_u32 v5, 4, v1\nv_mad_u32_u24 v4, v4, 5, v5\nv_lshlrev_b32 v4, 7, v4')
            a('v_min_u32 v4, L_end-L_pc0, v4')
            a('global_load_dword v195, v4, s[4:5]')
        a('s_load_dwordx8 s[24:31], s[0:1], 64')
        a('s_load_dwordx2 s[32:33], s[0:1], 96')
        a('v_readfirstlane_b32 s35, v2')
        a('v_lshrrev_b32 v2, 4, v1\nv_and_b32 v3, 15, v1')
        a('s_and_b32 s36, s2, 7\ns_lshr_b32 s37, s2, 3')
        a('s_setprio 2')
        a('v_mov_b32 v5, 0\nv_mov_b32 v29, 0')
        if self.o.get('kill_H'):
            a('s_cmp_lt_u32 s37, 8\ns_cbranch_scc1 L_end')
        if self.o.get('kill_F'):
            a('s_cmp_ge_u32 s37, 24\ns_cbranch_scc1 L_end')
        if self.o.get('kill_A'):
            a('s_sub_u32 s64, s37, 8\ns_cmp_lt_u32 s64, 16\ns_cbranch_scc1 L_end')
        a('s_cmp_gt_u32 s35, 2\ns_cbranch_scc1 L_noq1')
        self.q1_phase()
        a('s_cmp_ge_u32 s37, 24\ns_cbranch_scc1 L_F_go')
        a('s_cmp_ge_u32 s37, 8\ns_cbranch_scc1 L_A_go')
        self.h_params()
        a.label('L_q2')
        self.q2_phase()
        a('s_branch L_roleH')
        a.label('L_noq1')
        a('s_cmp_lt_u32 s37, 8\ns_cbranch_scc1 L_H_start')
        a('s_cmp_lt_u32 s37, 24\ns_cbranch_scc1 L_roleA')
        self.clear_and_flag(False)
        self.pf_uk()
        a('s_branch L_roleF')
        a.label('L_H_start')
        self.h_params()
        a(f's_sub_u32 s65, s35, 4\ns_lshl_b32 s73, s65, 14\ns_add_u32 s73, s73, {UKB}\ns_lshl_b32 s65, s65, 6\ns_lshl_b32 s64, s39, 8\ns_add_u32 s64, s64, s65')
        a('v_add_u32 v20, s64, v2\nv_lshlrev_b32 v20, 13, v20\nv_xor_b32 v21, v3, v2\nv_lshl_add_u32 v20, v21, 4, v20')
        for i in range(1, 4):
            a(f'v_xor_b32 v{20+i}, {64*i}, v20')
        a('s_mov_b32 s74, 0')
        self.clear_and_flag(True)
        a('s_cmp_eq_u32 s35, 3\ns_cbranch_scc1 L_q2')
        a('s_branch L_roleH')

    def pf_uk(self):
        a = self.a
        if not self.o['pf_uk']:
            return
        sk = self.lab('pfuk')
        a(f's_sub_u32 s64, s35, 3\ns_cmp_gt_u32 s64, 1\ns_cbranch_scc1 {sk}')
        a('s_sub_u32 s65, s37, 8\ns_lshr_b32 s66, s65, 3\ns_lshl_b32 s66, s66, 4\ns_and_b32 s65, s65, 7\ns_lshl_b32 s65, s65, 6')
        a('s_add_u32 s65, s65, s66\ns_add_u32 s65, s65, 16\ns_lshl_b32 s64, s64, 3\ns_add_u32 s65, s65, s64')
        a('v_lshrrev_b32 v5, 3, v1\nv_add_u32 v5, s65, v5\nv_and_b32 v6, 7, v1\ns_lshl_b32 s64, s36, 10\nv_lshl_add_u32 v6, v6, 7, s64\nv_lshl_add_u32 v5, v5, 13, v6')
        a('global_load_dword v194, v5, s[14:15]')
        a.label(sk)

    def clear_and_flag(self, isH):
        a = self.a
        if isH:
            a('v_lshrrev_b32 v5, 5, v1\nv_lshlrev_b32 v5, 15, v5\nv_and_b32 v4, 31, v1\nv_lshl_add_u32 v4, v4, 4, v5')
            a(f's_add_u32 s72, s58, {WS_QA}')
        self.late_common()
        if isH:
            sk = self.lab('clr')
            a(f's_cmp_lg_u32 s35, 7\ns_cbranch_scc1 {sk}')
            a(f'buffer_store_dwordx4 v[{POI}:{POI+3}], v4, s[40:43], s72 offen sc1')
            a.label(sk)
        a('s_barrier\ns_barrier')
        a(f'v_mov_b32 v251, {CNT}')
        n = 0

        def ukdma(i0, i1):
            for i in range(i0, i1):
                a('s_mov_b32 m0, s73\ns_add_u32 s73, s73, 1024')
                a(f'buffer_load_dwordx4 v{20+(i&3)}, s[52:55], s74 offen {"nt" if i < 4 else ""} lds')
                a('s_add_u32 s74, s74, 32768')
        if isH:
            self.srd(52, 14, 512 * 8192, 's56')
            n = self.o['uk_pre']
            sk = self.lab('now3')
            a(f's_cmp_eq_u32 s35, 3\ns_cbranch_scc1 {sk}')
            ukdma(0, n)
            a.label(sk)
        self.masks_smf()
        a(f'v_mov_b32 v{SLO}, 0x05040100\nv_mov_b32 v{SHI}, 0x07060302')
        a('s_waitcnt lgkmcnt(0)')
        self.flag_regs()
        if isH:
            sk = self.lab('flg')
            a(f's_cmp_lg_u32 s35, 7\ns_cbranch_scc1 {sk}')
            a('s_lshl_b32 s65, s36, 3\ns_add_u32 s65, s65, s37')
            a(f's_waitcnt vmcnt({n})')
            self.flag_store(FL_HF, 's65')
            a.label(sk)
            sk = self.lab('now3')
            a(f's_cmp_eq_u32 s35, 3\ns_cbranch_scc1 {sk}')
            self.hold(4)
            ukdma(n, 16)
            self.bump(1)
            a.label(sk)
            self.stamp(1)

    def stat_read(self):
        a = self.a
        a(f'v_lshlrev_b32 v4, 3, v1\nv_add_u32 v4, {STAT}, v4')
        a(f'ds_read2_b32 v[18:19], v4 offset1:1')
        a(f's_waitcnt lgkmcnt(0)\nv_mov_b32 v{MEAN}, v18\nv_mov_b32 v{RDEN}, v19')

    def hold(self, n, c=0, vt=31, sleep=1):
        a = self.a
        lp, done = self.lab('hold'), self.lab('holdd')
        a(f's_mov_b32 s67, {self.tmo * 8}')
        a.label(lp)
        a(f'ds_read_b32 v{vt}, v251 offset:{4*c}')
        a('s_sub_u32 s67, s67, 1\ns_cmp_eq_u32 s67, 0')
        a(f's_cbranch_scc1 {done}')
        if sleep:
            a(f's_sleep {sleep}')
        a('s_waitcnt lgkmcnt(0)')
        a(f'v_cmp_gt_u32 vcc, {n}, v{vt}')
        a(f's_cbranch_vccnz {lp}')
        a.label(done)
        a('s_waitcnt lgkmcnt(0)')

    def q2_phase(self):
        a, o = self.a, self.o
        UK, BFQ, DQ = 32, 96, 112
        a(f's_lshl_b32 s64, s35, 14\ns_add_u32 s64, s64, {UKB}\nv_lshl_add_u32 v24, v3, 8, s64\nv_xor_b32 v21, v3, v2\nv_lshl_add_u32 v24, v21, 4, v24')
        for s in range(1, 4):
            a(f'v_xor_b32 v{24+s}, {64*s}, v24')
        a(f'v_mul_u32_u24 v7, 288, v3\nv_lshl_add_u32 v7, v2, 4, v7\nv_add_u32 v7, {QL2}, v7')
        a('v_bfe_u32 v22, v3, 2, 1\nv_lshlrev_b32 v22, 15, v22\nv_lshrrev_b32 v23, 3, v3\nv_lshl_add_u32 v22, v23, 5, v22\nv_lshl_add_u32 v22, v2, 3, v22')
        a(f's_lshl_b32 s65, s35, 7\ns_add_u32 s64, s58, s65\ns_add_u32 s73, s64, {WS_QA}')
        a('v_cmp_lt_u32 s[68:69], 7, v3')
        lp, done, first = self.lab('qp'), self.lab('qpd'), self.lab('qpf')
        a('v_lshrrev_b32 v4, 5, v1\nv_lshl_add_u32 v4, v4, 2, s35\nv_and_b32 v5, 31, v1')
        a(f'v_mul_u32_u24 v6, 288, v4\nv_lshl_add_u32 v6, v5, 3, v6\nv_add_u32 v6, {QL2}, v6')
        a('v_lshlrev_b32 v4, 9, v4\nv_lshl_add_u32 v4, v5, 4, v4')
        a(f's_lshl_b32 s72, s38, 13\ns_add_u32 s72, s72, {WS_QP}\ns_add_u32 s75, s72, 4096')
        self.hold(4, 1)
        a('buffer_load_dwordx4 v[12:15], v4, s[40:43], s72 offen sc1')
        a('buffer_load_dwordx4 v[16:19], v4, s[40:43], s75 offen sc1')
        self.bump(4)
        a(f's_mov_b32 s66, {self.tmo}\ns_branch {first}')
        a.label(lp)
        if o['qp_sleep']:
            a(f's_sleep {o["qp_sleep"]}')
        a('buffer_load_dwordx4 v[12:15], v4, s[40:43], s72 offen sc1')
        a('buffer_load_dwordx4 v[16:19], v4, s[40:43], s75 offen sc1')
        a.label(first)
        a('s_sub_u32 s66, s66, 1\ns_cmp_eq_u32 s66, 0')
        a('s_waitcnt vmcnt(1)')
        a(f'v_perm_b32 v28, v13, v12, v{SLO}\nv_perm_b32 v29, v15, v14, v{SLO}')
        a(f'v_perm_b32 v8, v13, v12, v{SHI}\nv_perm_b32 v9, v15, v14, v{SHI}')
        a('v_xor_b32 v28, s60, v28\nv_xor_b32 v29, s61, v29')
        a('s_waitcnt vmcnt(0)')
        a(f's_cbranch_scc1 {done}')
        a(f'v_perm_b32 v30, v17, v16, v{SLO}\nv_perm_b32 v31, v19, v18, v{SLO}')
        a('v_xor_b32 v30, s60, v30\nv_xor_b32 v31, s61, v31')
        a('v_or3_b32 v28, v28, v29, v30\nv_or_b32 v28, v28, v31')
        a('v_cmp_ne_u32 vcc, 0, v28')
        a(f's_cbranch_vccnz {lp}')
        a.label(done)
        a('ds_write_b64 v6, v[8:9]')
        a(f'v_perm_b32 v10, v17, v16, v{SHI}\nv_perm_b32 v11, v19, v18, v{SHI}')
        a(f'ds_write_b64 v6, v[10:11] offset:{8*288}')
        self.bump(2)
        self.stamp(4)
        self.hold(8, 2, sleep=0)
        self.stamp(5)
        for s in range(4):
            a(f'ds_read_b128 v[{BFQ+4*s}:{BFQ+4*s+3}], v7 offset:{64*s}')
        seq = [(p, s) for p in range(2) for s in range(4)]

        def rd(p, s):
            for t in (2 * p, 2 * p + 1):
                a(f'ds_read_b128 v[{UK+16*t+4*s}:{UK+16*t+4*s+3}], v{24+s} offset:{4096*t}')
        for p, s in seq[:5]:
            rd(p, s)
        a('s_mov_b64 vcc, s[68:69]')
        for j, (p, s) in enumerate(seq):
            a(f's_waitcnt lgkmcnt({2 * min(4, 7 - j)})')
            for t in (2 * p, 2 * p + 1):
                self.mfma(DQ + 4 * t, UK + 16 * t + 4 * s, BFQ + 4 * s, s == 0)
            if j + 5 < 8:
                rd(*seq[j + 5])
        for p in range(2):
            D = DQ + 8 * p
            for r in range(4):
                a(f'v_cndmask_b32 v{8+r}, v{D+4+r}, v{D+r}, vcc')
            for r in range(4):
                a(f'v_cndmask_b32 v{D+r}, v{D+r}, v{D+4+r}, vcc')
            for r in range(4):
                a(f'v_add_f32_dpp v{D+r}, v{8+r}, v{D+r} row_ror:8 {DPPM}')
            for m in ('quad_perm:[1,0,3,2]', 'quad_perm:[2,3,0,1]'):
                for r in range(4):
                    a(f'v_add_f32_dpp v{D+r}, v{D+r}, v{D+r} {m} {DPPM}')
            a('s_mov_b32 exec_lo, 0x11111111\ns_mov_b32 exec_hi, 0x11111111')
            a(f'v_cvt_pk_bf16_f32 v{12+2*p}, v{D}, v{D+1}\nv_cvt_pk_bf16_f32 v{13+2*p}, v{D+2}, v{D+3}')
            a(f'buffer_store_dwordx2 v[{12+2*p}:{13+2*p}], v22, s[40:43], s73 offen offset:{64*p} sc1')
            a('s_mov_b64 exec, -1')
        self.bump(3)
        self.stamp(6)
        self.hold(4, 3, sleep=0)

    def gate(self, idx):
        a = self.a
        sk = self.lab('gate')
        a(f's_cmp_lg_u32 s35, 7\ns_cbranch_scc1 {sk}')
        a(f's_lshl_b32 s64, s36, 3\ns_add_u32 s64, s64, {idx}\ns_lshl_b32 s64, s64, 7\ns_add_u32 s64, s64, {FL_G}\nv_mov_b32 v30, s64')
        self.poll_flags([30], 12, sleep=self.o.get('gate_sleep', 4))
        a.label(sk)
        a('s_barrier')

    def pf_ffn(self):
        a, hp = self.a, self.o.get('hp', 0)
        if not hp:
            return
        a('s_sub_u32 s64, s35, 4\ns_mul_i32 s64, s64, 144')
        a('v_bfe_u32 v4, v1, 2, 3\nv_mad_u32_u24 v4, v4, 18, s64\nv_bfe_u32 v5, v1, 1, 1\nv_add_u32 v4, v4, v5\nv_mul_u32_u24 v4, 9216, v4')
        a('s_lshl_b32 s64, s37, 1\nv_and_b32 v5, 1, v1\nv_add_u32 v5, s64, v5\nv_cmp_lt_u32 vcc, 8, v5\nv_subrev_u32 v6, 9, v5\nv_cndmask_b32 v5, v5, v6, vcc')
        a('s_mul_i32 s64, s36, 1152\nv_lshl_add_u32 v4, v5, 7, v4\nv_add_u32 v4, s64, v4')
        a('v_lshrrev_b32 v5, 5, v1')
        for j in range(0, hp, 2):
            a(f's_add_u32 s64, s37, {9 - hp + j}\nv_add_u32 v6, s64, v5\nv_min_u32 v6, s37, v6' if False else f's_add_u32 s64, s37, {9 - hp + j}\nv_add_u32 v6, s64, v5')
            a('v_subrev_u32 v7, 9, v6\nv_cmp_lt_u32 s[64:65], 8, v6\nv_cndmask_b32 v6, v6, v7, s[64:65]')
            a('v_mul_u32_u24 v6, 18432, v6\nv_add_u32 v6, v6, v4')
            a('s_mov_b64 s[66:67], exec\ns_andn2_b64 exec, exec, vcc\nglobal_load_dword v194, v6, s[22:23]')
            a('s_and_b64 exec, s[66:67], vcc\nglobal_load_dword v194, v6, s[24:25]\ns_mov_b64 exec, -1')

    def uv_setup(self):
        a = self.a
        self.srd(48, 16, 512 * 8192, 's56')
        a('s_sub_u32 s70, s35, 4')
        a('s_lshl_b32 s64, s39, 8\ns_lshl_b32 s65, s70, 6\ns_add_u32 s64, s64, s65')
        a('v_add_u32 v232, s64, v2\nv_lshlrev_b32 v232, 13, v232\nv_lshlrev_b32 v5, 2, v2\nv_xor_b32 v5, v5, v3\nv_lshl_add_u32 v232, v5, 4, v232')
        for i in range(1, 4):
            a(f'v_xor_b32 v{232+i}, {16*i}, v232')
        a('s_lshl_b32 s78, s70, 14\ns_mov_b32 s79, 0')

    def uvdma(self, i0, i1, win=0):
        a = self.a
        for i in range(i0, i1):
            a('s_mov_b32 m0, s78\ns_add_u32 s78, s78, 1024')
            a(f'buffer_load_dwordx4 v{232+(i&3)}, s[48:51], s79 offen nt lds')
            a('s_add_u32 s79, s79, 32768')
            if win:
                a(f's_waitcnt vmcnt({win})')

    def h_params(self):
        a = self.a
        a('s_lshr_b32 s38, s37, 1\ns_lshl_b32 s64, s36, 2\ns_add_u32 s38, s38, s64\ns_and_b32 s39, s37, 1')
        a('s_lshl_b32 s56, s38, 8')
        a('s_lshl_b32 s58, s38, 10\ns_lshl_b32 s64, s39, 9\ns_add_u32 s58, s58, s64')

    def role_H(self):
        a, o = self.a, self.o
        W4B, R3, R1 = 65536, 81920, 102400
        WO, UVT, BF2, A2 = 32, 160, 8, 224

        a.label('L_roleH')
        a(f's_mul_i32 s57, s2, 4608\ns_add_u32 s57, s57, {WS_CP}')
        a('s_mul_i32 s64, s38, 147456')
        a('s_add_u32 s52, s18, s64\ns_addc_u32 s53, s19, 0\ns_mov_b32 s54, 147456\ns_mov_b32 s55, 0x20000')
        a(f'v_lshlrev_b32 v236, 4, v0\nv_add_u32 v237, {R3}, v236')
        a('s_cmp_ge_u32 s35, 4\ns_cbranch_scc1 L_H_gather')
        a('s_setprio 0')
        a('v_lshrrev_b32 v4, 1, v2\nv_lshlrev_b32 v4, 2, v4\nv_and_b32 v5, 1, v2\nv_add_u32 v4, v4, v5')
        a('s_lshl_b32 s64, s35, 5\nv_add_u32 v4, s64, v4')
        a('v_mul_u32_u24 v5, 1152, v4\nv_lshl_add_u32 v5, v3, 4, v5')
        a('s_mul_i32 s70, s39, 18432\ns_xor_b32 s71, s39, 1\ns_mul_i32 s71, s71, 18432')
        wl = [(s, hf) for s in range(4) for hf in range(2)]

        def wo_loads(lst):
            for s, hf in lst:
                a(f's_add_u32 s64, s{70 + (s>>1)}, {(8*hf + 2*(s&1))*1152}')
                for cb in range(4):
                    r = WO + 32 * s + 8 * cb + 4 * hf
                    a(f'buffer_load_dwordx4 v[{r}:{r+3}], v5, s[52:55], s64 offen offset:{256*cb}')
                    if 8 * s + 4 * hf + cb < o.get('wo_thr', 0):
                        a(f's_waitcnt vmcnt({o.get("wo_win", 0)})')
        wo_loads(wl[:o.get('wo_pre', 3)])
        a(f'v_and_b32 v6, 7, v3\nv_lshlrev_b32 v6, 4, v6\nv_lshl_add_u32 v6, v4, 7, v6\nv_add_u32 v6, {W4B}, v6')
        a('s_lshl_b32 s64, s39, 11\nv_add_u32 v6, s64, v6\nv_xor_b32 v7, 2048, v6')
        a('v_lshrrev_b32 v8, 2, v3\nv_lshl_add_u32 v9, v2, 3, v8\nv_lshlrev_b32 v9, 8, v9')
        a('v_and_b32 v10, 1, v2\nv_lshlrev_b32 v10, 1, v10\nv_lshl_or_b32 v10, v8, 2, v10')
        a('s_lshl_b32 s64, s35, 2\ns_lshl_b32 s65, s39, 1\ns_or_b32 s64, s64, s65')
        a('v_bfe_u32 v11, v3, 1, 1\nv_or_b32 v11, s64, v11\nv_xor_b32 v10, v10, v11\nv_lshl_add_u32 v9, v10, 4, v9')
        a('v_and_b32 v10, 1, v3\nv_lshl_add_u32 v9, v10, 3, v9')
        a('v_xor_b32 v10, 16, v9\nv_add_u32 v10, 1024, v10')
        a('s_barrier')
        for tt in range(2):
            for hh in range(2):
                a(f'v_xor_b32 v11, {32*tt}, v{9+hh}')
                for ks in range(8):
                    r = UVT + 32 * tt + 4 * ks + 2 * hh
                    a(f'ds_read_b64_tr_b16 v[{r}:{r+1}], v11 offset:{8192*ks}')
        wo_loads(wl[o.get('wo_pre', 3):])
        a('s_setprio 2')
        if o.get('w_land'):
            a('s_waitcnt vmcnt(0)')
        a('s_barrier')
        a(f'v_lshrrev_b32 v4, 3, v3\nv_mul_u32_u24 v4, 576, v4\nv_lshl_add_u32 v4, v2, 4, v4\nv_add_u32 v4, {R1}, v4')
        a(f's_mul_i32 s64, s35, 4608\ns_add_u32 s64, s64, {R3}')
        self.r3_waddr(5, 9, 's64')
        a('s_waitcnt vmcnt(0) lgkmcnt(0)')
        self.stamp(7)
        a('s_barrier')
        self.stamp(8)
        for ks in range(4):
            a(f'ds_read_b128 v[{BF2+4*ks}:{BF2+4*ks+3}], v4 offset:{64*ks}')
        for ks in range(8):
            a(f's_waitcnt lgkmcnt({min(3, 7-ks)})')
            for tt in range(2):
                self.mfma(A2 + 4 * tt, UVT + 32 * tt + 4 * ks, BF2 + 4 * (ks & 3), ks == 0)
            if ks < 4:
                a(f'ds_read_b128 v[{BF2+4*ks}:{BF2+4*ks+3}], v4 offset:{64*(ks+4)}')
            if 2 <= ks <= 6:
                for r in range(4):
                    a(f'v_mov_b32 v{UVT+4*(ks-2)+r}, 0')
        OA, C4, AF3 = 160, 192, 8
        for s in range(4):
            for hf in range(2):
                r = C4 + 8 * s + 4 * hf
                a(f'ds_read_b128 v[{r}:{r+3}], v{6 + (s>>1)} offset:{(8*hf + 2*(s&1))*128}')
        for s in range(4):
            a(f'v_cvt_pk_bf16_f32 v{24+s}, v{A2+2*s}, v{A2+2*s+1}')
        for s in range(4):
            self.sfrag(AF3 + 4 * s, 24 + s)
            for cb in range(4):
                self.smf(OA + 4 * cb, AF3 + 4 * s, WO + 32 * s + 8 * cb)
        a('s_waitcnt lgkmcnt(0)')
        for s in range(4):
            self.smf(OA + 16, AF3 + 4 * s, C4 + 8 * s)
        for cb in range(4):
            a(f'ds_write_b128 v5, v[{OA+4*cb}:{OA+4*cb+3}] offset:{cb*512}')
        a('s_mov_b32 exec_lo, 0x00ff00ff\ns_mov_b32 exec_hi, 0x00ff00ff')
        a(f'ds_write_b128 v5, v[{OA+16}:{OA+19}] offset:2048')
        a('s_mov_b64 exec, -1')
        a('s_waitcnt lgkmcnt(0)')
        self.stamp(9)
        a('s_branch L_H_join')
        a.label('L_H_gather')
        G = 32
        self.uv_setup()
        e1, e2, win = o['uv_e1'], o['uv_e2'], o['uv_win']
        self.hold(4, 4)
        self.uvdma(0, e1)
        a(f's_waitcnt vmcnt({e1})')
        self.stamp(3)
        self.bump(2)
        fast = [self.lab('uvf') for _ in range(17)]
        for i in range(e1, e2):
            a('ds_read_b32 v31, v251 offset:12')
            a(f's_waitcnt vmcnt({win}) lgkmcnt(0)')
            a(f'v_cmp_le_u32 vcc, 4, v31\ns_cbranch_vccnz {fast[i]}')
            self.uvdma(i, i + 1)
        self.hold(4, 3)
        a(f's_branch {fast[e2]}')
        for i in range(e1, 17):
            a.label(fast[i])
            if i < 16:
                self.uvdma(i, i + 1)
        a('s_sub_u32 s70, s35, 4')
        a('v_lshrrev_b32 v4, 3, v1\nv_mul_u32_u24 v4, 1152, v4\nv_and_b32 v5, 7, v1\nv_lshl_add_u32 v4, v5, 4, v4')
        a(f's_lshl_b32 s73, s70, 12\ns_add_u32 s73, s73, {W4B}\ns_mul_i32 s74, s70, {32*1152}\ns_add_u32 s74, s74, 1024')
        for i in range(4):
            a('s_mov_b32 m0, s73')
            a('buffer_load_dwordx4 v4, s[52:55], s74 offen lds')
            if i < 3:
                a(f's_add_u32 s73, s73, 1024\ns_add_u32 s74, s74, {8*1152}')
        a('s_lshr_b32 s64, s70, 1\ns_and_b32 s65, s70, 1')
        a('v_and_b32 v4, 7, v3\nv_lshl_add_u32 v4, v2, 3, v4\nv_lshlrev_b32 v4, 8, v4')
        a(f's_lshl_b32 s66, s64, 13\ns_lshl_b32 s67, s38, 3\ns_add_u32 s66, s66, s67\ns_add_u32 s71, s66, {WS_ML}')
        a('v_lshrrev_b32 v5, 1, v2\nv_lshlrev_b32 v5, 3, v5\nv_and_b32 v6, 1, v2\nv_add_u32 v5, v5, v6')
        a(f'v_mul_u32_u24 v5, {PSTR}, v5\nv_lshl_add_u32 v5, v3, 4, v5')
        a(f's_mul_i32 s66, s64, {32*PSTR}\ns_add_u32 s66, s66, s58\ns_lshl_b32 s67, s65, 8\ns_add_u32 s66, s66, s67\ns_add_u32 s72, s66, {WS_PART}')
        for k in range(1, 8):
            a(f's_add_u32 s{72+k}, s72, {(16*(k&1) + 2*(k>>1))*PSTR}')
        a(f's_mul_i32 s64, s64, 576\ns_add_u32 s64, s64, s67\ns_add_u32 s64, s64, {R1}')
        a('v_lshlrev_b32 v7, 3, v6\nv_lshl_add_u32 v7, v3, 4, v7\nv_add_u32 v7, s64, v7')
        a(f's_lshr_b32 s64, s38, 4\ns_lshl_b32 s64, s64, 13\ns_add_u32 s64, s64, {FL_A}\nv_lshl_add_u32 v8, v1, 7, s64')
        for r in range(4):
            a(f'v_mov_b32 v{24+r}, 0')
        a('s_waitcnt vmcnt(0)')
        self.stamp(2)
        a('s_barrier')
        sk = self.lab('ofl')
        a(f's_cmp_lg_u32 s35, 7\ns_cbranch_scc1 {sk}')
        self.poll_flags([8], 12, sleep=12)
        a.label(sk)
        a('s_barrier')
        if o.get('ml_sent', 0):
            lp, done = self.lab('ml'), self.lab('mld')
            a(f's_mov_b32 s66, {self.tmo}')
            a.label(lp)
            a('buffer_load_dword v8, v4, s[40:43], s71 offen sc1')
            a('s_sub_u32 s66, s66, 1\ns_cmp_eq_u32 s66, 0\ns_waitcnt vmcnt(0)')
            a(f's_cbranch_scc1 {done}')
            a(f'v_cmp_eq_u32 vcc, -1, v8\ns_cbranch_vccz {done}')
            a(f's_sleep {o.get("ml_sleep", 2)}\ns_branch {lp}')
            a.label(done)
        self.stamp(7)

        def issue():
            a('buffer_load_dwordx2 v[8:9], v4, s[40:43], s71 offen sc1')
            for k in range(8):
                a(f'buffer_load_dwordx4 v[{G+4*k}:{G+4*k+3}], v5, s[40:43], s{72+k} offen sc1')
        self.poll_data(issue, [8, 9] + list(range(G, G + 32)), 10)
        self.stamp(8)
        a(f'v_max_f32_dpp v10, v8, v8 quad_perm:[1,0,3,2] {DPPM}')
        a(f'v_max_f32_dpp v10, v10, v10 quad_perm:[2,3,0,1] {DPPM}')
        a(f'v_max_f32_dpp v10, v10, v10 row_half_mirror {DPPM}')
        a('v_mov_b32 v11, v10\nv_permlane16_swap_b32 v10, v11\nv_max_f32 v10, v10, v11')
        a('v_mov_b32 v11, v10\nv_permlane32_swap_b32 v10, v11\nv_max_f32 v10, v10, v11')
        a('v_sub_f32 v8, v8, v10\nv_exp_f32 v8, v8')
        a(f'v_mov_b32_dpp v10, v8 quad_perm:[1,1,3,3] {DPPM}')
        a('v_cvt_pk_bf16_f32 v11, v8, v8')
        a('v_cvt_pk_bf16_f32 v10, v8, v10')
        a('v_lshlrev_b32 v11, 16, v11\nv_mul_f32 v9, v9, v11')
        lchain = [f'v_add_f32_dpp v9, v9, v9 quad_perm:[1,0,3,2] {DPPM}',
                  f'v_add_f32_dpp v9, v9, v9 quad_perm:[2,3,0,1] {DPPM}',
                  f'v_add_f32_dpp v9, v9, v9 row_half_mirror {DPPM}\nv_mov_b32 v11, v9',
                  'v_permlane16_swap_b32 v9, v11\nv_add_f32 v9, v9, v11\nv_mov_b32 v11, v9']
        for s in range(4):
            self.sfrag(12 + 4 * (s & 1), 10, bcast=2 * s)
            a(lchain[s])
            self.smf(24, 12 + 4 * (s & 1), G + 8 * s)
        a('v_permlane32_swap_b32 v9, v11\nv_add_f32 v9, v9, v11\nv_rcp_f32 v9, v9')
        for r in range(4):
            a(f'v_mul_f32 v{24+r}, v{24+r}, v9')
        a('v_cvt_pk_bf16_f32 v10, v24, v25\nv_cvt_pk_bf16_f32 v11, v26, v27')
        a('ds_write_b64 v7, v[10:11]')
        a('s_waitcnt lgkmcnt(0)\ns_barrier')
        self.stamp(9)
        a.label('L_H_join')
        a('s_and_b32 s74, s60, 0xfff\ns_xor_b32 s75, s74, 0xfff\ns_mov_b32 s76, 0xfff\nv_mov_b32 v18, s74\nv_mov_b32 v19, s75')
        a('s_barrier')
        self.r3_read_store(4, 's57', 237, 236)
        self.stamp(10)
        self.write_stamps()
        a('s_endpgm')

    def a_params(self):
        a = self.a
        a('s_sub_u32 s64, s37, 8\ns_and_b32 s39, s64, 1\ns_lshr_b32 s64, s64, 1\ns_lshl_b32 s38, s36, 3\ns_add_u32 s38, s38, s64')
        a(f's_mul_i32 s57, s38, {PSTR}\ns_lshl_b32 s64, s39, 14\ns_add_u32 s57, s57, s64\ns_add_u32 s57, s57, {WS_PART}')
        a(f's_lshl_b32 s58, s38, 8\ns_lshl_b32 s64, s39, 7\ns_add_u32 s58, s58, s64\ns_add_u32 s58, s58, {WS_ML}')

    def role_A(self):
        a, o = self.a, self.o
        SO, PV, BF, G, AS, AP = 32, 96, 160, 8, 224, 160
        QL = UP
        PB, MX = QL + 16640, MXB
        a.label('L_roleA')
        if not o['pf_code']:
            self.code_prefetch(0, 8)
        a('s_barrier\ns_barrier')
        self.late_common()
        a(f'v_lshlrev_b32 v4, 2, v1\nv_add_u32 v4, {MX}, v4\nv_mov_b32 v5, 0xff800000\nv_cmp_gt_u32 vcc, 16, v1\nv_cndmask_b32 v5, 0, v5, vcc')
        a('ds_write_b32 v4, v5')
        self.pf_uk()
        if o['clr_early']:
            sk = self.lab('aclr')
            a(f's_cmp_eq_u32 s35, 3\ns_cbranch_scc1 {sk}')
            self.a_params()
            a('s_sub_u32 s64, s35, 4\ns_lshl_b32 s64, s64, 12\ns_add_u32 s64, s64, s57\nv_lshlrev_b32 v4, 4, v1')
            for i in range(4):
                a(f'buffer_store_dwordx4 v[{POI}:{POI+3}], v4, s[40:43], s64 offen offset:{1024*i} sc1 {"nt" if o.get("clr_nt") else ""}')
            a('v_and_b32 v4, 0x70, v4')
            a(f'buffer_store_dwordx4 v[{POI}:{POI+3}], v4, s[40:43], s58 offen sc1')
            a.label(sk)
        a('s_waitcnt lgkmcnt(0)')
        self.flag_regs()
        a.label('L_A_go')
        self.a_params()
        a('s_lshl_b32 s65, s39, 3\ns_and_b32 s66, s38, 7\n' + {0: 's_mov_b32 s65, s66', 1: 's_or_b32 s65, s65, s66', 2: 's_nop 0'}[o.get('ckv_rot', 1)])
        a('s_lshl_b32 s73, s65, 13\ns_lshl_b32 s66, s35, 10\ns_or_b32 s73, s73, s66')
        a('s_and_b32 s65, s65, 1\ns_lshl_b32 s65, s65, 1\ns_lshr_b32 s66, s35, 2\ns_or_b32 s65, s65, s66')
        a('s_and_b32 s64, s35, 3\ns_lshl_b32 s64, s64, 2\ns_or_b32 s64, s64, s65\ns_lshl_b32 s64, s64, 4')
        a('v_lshlrev_b32 v24, 4, v1\nv_xor_b32 v20, s64, v24\nv_xor_b32 v21, 32, v20')
        a('s_lshl_b32 s56, s38, 17')
        self.srd(52, 10, 2 * 4096 * 1024, 's56')
        for r in range(4):
            a(f'v_mov_b32 v{POI+r}, -1')
        a(f's_lshl_b32 s64, s39, 12\nv_and_b32 v29, 31, v1\nv_lshl_add_u32 v29, v29, 7, s64\ns_mov_b32 s77, {WS_FLAGS + FL_HF}')
        def pf_gu(first, n, wave0):
            if not n:
                return
            sk = self.lab('pfgu')
            a(f's_sub_u32 s64, s35, {wave0}\ns_cmp_ge_u32 s64, {n}\ns_cbranch_scc1 {sk}')
            a(f's_add_u32 s64, s64, {first}\ns_lshl_b32 s64, s64, 1\ns_sub_u32 s65, s37, 8\ns_mul_i32 s65, s65, 36\ns_add_u32 s64, s64, s65')
            a('v_lshrrev_b32 v30, 5, v1\nv_mad_u32_u24 v30, v30, 18, s64\nv_bfe_u32 v31, v1, 4, 1\nv_add_u32 v30, v30, v31\nv_mul_u32_u24 v30, 9216, v30')
            a('v_and_b32 v31, 7, v1\nv_lshl_add_u32 v30, v31, 7, v30\ns_lshl_b32 s64, s36, 10\nv_add_u32 v30, s64, v30')
            a('s_mov_b32 exec_lo, 0x00ff00ff\ns_mov_b32 exec_hi, 0x00ff00ff\nglobal_load_dword v230, v30, s[22:23]')
            a('s_not_b64 exec, exec\nglobal_load_dword v230, v30, s[24:25]')
            a('s_mov_b64 exec, -1')
            a.label(sk)
        a('v_and_b32 v5, 3, v3\nv_lshlrev_b32 v5, 2, v5\nv_lshrrev_b32 v6, 2, v3\nv_or_b32 v5, v5, v6')
        a('s_lshl_b32 s64, s35, 4\nv_add_u32 v6, s64, v3\nv_lshlrev_b32 v6, 10, v6\nv_lshl_add_u32 v6, v2, 8, v6')
        a('v_lshl_add_u32 v6, v5, 4, v6')
        a('v_lshrrev_b32 v8, 2, v3\nv_lshl_add_u32 v9, v2, 3, v8\nv_lshlrev_b32 v9, 10, v9')
        a('v_and_b32 v10, 1, v2\nv_lshlrev_b32 v10, 1, v10\nv_lshl_or_b32 v10, v8, 2, v10')
        a('v_bfe_u32 v11, v3, 1, 1\ns_lshl_b32 s64, s35, 3\nv_add_u32 v11, s64, v11')
        a('v_xor_b32 v10, v10, v11\nv_lshl_add_u32 v9, v10, 4, v9')
        a('v_and_b32 v10, 1, v3\nv_lshl_add_u32 v9, v10, 3, v9')
        a('v_xor_b32 v10, 16, v9\nv_add_u32 v10, 4096, v10')
        a('s_lshr_b32 s64, s73, 15\ns_lshl_b32 s59, s64, 6\ns_lshl_b32 s64, s64, 15')
        a('v_mov_b32 v26, v6\nv_xor_b32 v24, s64, v9\nv_xor_b32 v25, s64, v10')
        a(f's_lshr_b32 s64, s38, 5\ns_lshl_b32 s64, s64, 15\ns_lshl_b32 s65, s39, 14\ns_add_u32 s64, s64, s65\ns_add_u32 s78, s64, {WS_QA}')
        a('s_add_u32 s79, s78, 8192')
        a('v_lshlrev_b32 v4, 4, v0')
        a(f's_mul_i32 s64, s35, 1040\ns_add_u32 s64, s64, {QL}\nv_lshl_add_u32 v5, v1, 4, s64')
        a(f'v_mul_u32_u24 v6, 1040, v3\nv_lshl_add_u32 v6, v2, 8, v6\nv_add_u32 v6, {QL}, v6')
        a(f'v_lshlrev_b32 v7, 2, v3\nv_add_u32 v7, {MX}, v7')
        a(f'v_mul_u32_u24 v16, 288, v3\nv_add_u32 v16, {PB}, v16')
        a('s_lshl_b32 s64, s35, 5\nv_lshl_add_u32 v17, v2, 3, s64\nv_add_u32 v17, v17, v16')
        a('v_lshl_add_u32 v16, v2, 4, v16')
        for t in range(4):
            a(f's_xor_b32 s64, s59, {64*t}\nv_add_u32 v{232+t}, s64, v16')
        a('v_lshlrev_b32 v18, 10, v3\nv_and_b32 v19, 1, v2\nv_lshl_add_u32 v18, v19, 5, v18')
        a('v_lshrrev_b32 v19, 1, v2\nv_lshl_add_u32 v18, v19, 4, v18\ns_lshl_b32 s64, s35, 7\nv_add_u32 v18, s64, v18')
        a(f'v_lshlrev_b32 v19, 3, v1\ns_mov_b32 s72, {hx(SCALE)}')

        def issue():
            a(f'buffer_load_dwordx4 v[{G}:{G+3}], v4, s[40:43], s78 offen sc1')
            a(f'buffer_load_dwordx4 v[{G+4}:{G+7}], v4, s[40:43], s79 offen sc1')
        a('s_cmp_eq_u32 s39, 0\ns_cselect_b32 s4, s18, s26\ns_cselect_b32 s5, s19, s27\ns_cselect_b32 s64, 0, 9216\ns_cselect_b32 s65, 0, 36')
        a('s_add_u32 s64, s64, 73728\ns_mul_i32 s64, s64, s38\ns_add_u32 s65, s65, 287')
        a('v_min_u32 v22, s65, v0\nv_lshlrev_b32 v22, 7, v22\nv_add_u32 v22, s64, v22')
        sk = self.lab('ago')
        a(f's_cmp_eq_u32 s35, 0\ns_cbranch_scc1 {sk}')
        a(f'v_mov_b32 v251, {CNT}')
        self.hold(o.get('a_go', 4))
        a.label(sk)
        self.stamp(1)
        for k in range(16):
            a(f's_xor_b32 s74, s73, {k*8192}')
            a('s_mov_b32 m0, s74')
            a(f'buffer_load_dwordx4 v{20+(k&1)}, s[52:55], s74 offen {"nt" if o.get("ckv_nt") else ""} lds')
            if o.get('dbg_a') and k in (3, 7, 11):
                self.stamp({3: 2, 7: 4, 11: 5}[k])
            if o.get('a_win') and k >= o['a_win'] and k < 15 and k < o['qa_at']:
                a(f's_waitcnt vmcnt({o["a_win"]})')
            if k == o['a_clr_at'] and not o.get('noclr') and not o['clr_early']:
                a('s_add_u32 s64, s57, 8192')
                a(f'buffer_store_dwordx4 v[{POI}:{POI+3}], v4, s[40:43], s57 offen sc1')
                a(f'buffer_store_dwordx4 v[{POI}:{POI+3}], v4, s[40:43], s64 offen sc1')
                a('v_and_b32 v30, 0x70, v4')
                a(f'buffer_store_dwordx4 v[{POI}:{POI+3}], v30, s[40:43], s58 offen sc1')
            if k == o['gate_at']:
                sk = self.lab('gsig')
                a(f's_lshl_b32 s64, s39, 3\ns_add_u32 s64, s64, s35\ns_cmp_lg_u32 s64, 1\ns_cbranch_scc1 {sk}')
                a('v_mov_b32 v224, s60\nv_mov_b32 v225, s61\nv_mov_b32 v226, s62\nv_mov_b32 v227, s63')
                a(f's_lshl_b32 s64, s38, 7\ns_add_u32 s64, s64, {WS_FLAGS + FL_G}')
                a('s_mov_b64 exec, 1\nbuffer_store_dwordx4 v[224:227], v1, s[40:43], s64 offen sc1\ns_mov_b64 exec, -1')
                a.label(sk)
            if k == o['fl_at']:
                sk = self.lab('afl0')
                a(f's_cmp_lg_u32 s35, 0\ns_cbranch_scc1 {sk}')
                a('buffer_load_dwordx4 v[228:231], v29, s[40:43], s77 offen sc1')
                a.label(sk)
            if k == o['qa_at']:
                assert o['qa_at'] > o['fl_at'] >= o['a_clr_at']
                sk, sk2 = self.lab('akw'), self.lab('akw')
                a(f's_cmp_lg_u32 s35, 0\ns_cbranch_scc1 {sk2}')
                a(f's_waitcnt vmcnt({o["qa_at"] - o["fl_at"]})')
                for r in range(4):
                    a(f'v_xor_b32 v{228+r}, s{60+r}, v{228+r}')
                a(f'v_or3_b32 v228, v228, v229, v230\nv_or_b32 v228, v228, v231\nv_cmp_ne_u32 vcc, 0, v228\ns_cbranch_vccz {sk}')
                self.poll_flags([29], 228, sleep=8)
                a.label(sk)
                self.bump(1)
                a.label(sk2)
                self.hold(1, 1)
                if o.get('dbg_a'):
                    self.stamp(6)
                issue()
        self.stamp(3)

        def pfw(k):
            if k:
                a('global_load_dword v228, v22, s[4:5]')
        trl = [(t, ct, hh) for t in range(4) for ct in range(4) for hh in range(2)]

        def tr(lst):
            for t, ct, hh in lst:
                if ct == 0 and hh == 0:
                    a(f'v_xor_b32 v27, {t*32768}, v24\nv_xor_b32 v28, {t*32768}, v25')
                r = PV + 16 * ct + 4 * t + 2 * hh
                if ct == 0:
                    a(f'ds_read_b64_tr_b16 v[{r}:{r+1}], v{27 + hh}')
                else:
                    a(f'v_xor_b32 v30, {ct*32}, v{27+hh}')
                    a(f'ds_read_b64_tr_b16 v[{r}:{r+1}], v30')
        if o['keys_first']:
            assert o['qa_at'] == 15
            a('s_waitcnt vmcnt(2)\ns_barrier')
            self.stamp(7)
            sk = self.lab('afl')
            a(f's_cmp_lg_u32 s35, 7\ns_cbranch_scc1 {sk}')
            a('s_lshl_b32 s65, s39, 6\ns_add_u32 s65, s65, s38')
            self.flag_store(FL_A, 's65')
            a.label(sk)
            for s in range(16):
                a(f'v_xor_b32 v27, {s*16}, v26')
                a(f'ds_read_b128 v[{SO+4*s}:{SO+4*s+3}], v27')
            tr(trl)
            ntr = 32
            self.poll_data(issue, list(range(G, G + 8)), 20, first_issued=True, first_wait=0)
            self.stamp(8)
            a(f'ds_write_b128 v5, v[{G}:{G+3}]')
            a(f'ds_write_b128 v5, v[{G+4}:{G+7}] offset:{8*1040}')
            if o['pf_wo']:
                a('global_load_dword v228, v22, s[18:19]')
            a('s_waitcnt lgkmcnt(0)\ns_barrier')
            for s in range(15):
                a(f'ds_read_b128 v[{BF+4*s}:{BF+4*s+3}], v6 offset:{16*s}')
            for s in range(16):
                if s == 0:
                    a('s_waitcnt lgkmcnt(14)')
                    self.mfma(AS, SO, BF, True)
                    a(f'ds_read_b128 v[{BF+60}:{BF+63}], v6 offset:{16*15}')
                else:
                    if s & 1:
                        a(f's_waitcnt lgkmcnt({max(14-s, 0)})')
                    self.mfma(AS, SO + 4 * s, BF + 4 * s)
        else:
            self.poll_data(issue, list(range(G, G + 8)), 20, first_issued=True, first_wait=15 - o['qa_at'])
            self.stamp(8)
            a(f'ds_write_b128 v5, v[{G}:{G+3}]')
            a(f'ds_write_b128 v5, v[{G+4}:{G+7}] offset:{8*1040}')
            a('s_waitcnt lgkmcnt(0)\ns_barrier')
            pfw(o['w1a'])
            for s in range(16):
                a(f'ds_read_b128 v[{BF+4*s}:{BF+4*s+3}], v6 offset:{16*s}')
            npre = o.get('tr_pre', 24) if o['qa_at'] >= 11 else 0
            tr(trl[:npre])
            trl = trl[npre:]
            for s in range(8):
                a(f'v_xor_b32 v{8+s}, {s*16}, v26')
            a(f's_waitcnt vmcnt({1 if o["w1a"] else 0})\ns_barrier')
            self.stamp(7)
            for s in range(16):
                if s < 8:
                    a(f'ds_read_b128 v[{SO+4*s}:{SO+4*s+3}], v{8+s}')
                    a(f'v_xor_b32 v{8+s}, 128, v{8+s}')
                else:
                    a(f'ds_read_b128 v[{SO+4*s}:{SO+4*s+3}], v{s}')
                if s == 3:
                    pfw(o['w1b'])
                    sk = self.lab('afl')
                    a(f's_cmp_lg_u32 s35, 7\ns_cbranch_scc1 {sk}')
                    a('s_lshl_b32 s65, s39, 6\ns_add_u32 s65, s65, s38')
                    self.flag_store(FL_A, 's65')
                    a.label(sk)
                if s >= 6:
                    a('s_waitcnt lgkmcnt(6)')
                    self.mfma(AS, SO + 4 * (s - 6), BF + 4 * (s - 6), s == 6)
            ntr = min(o.get('tr_s', 0), len(trl))
            for s in range(10, 16):
                a(f's_waitcnt lgkmcnt({15 - s})')
                self.mfma(AS, SO + 4 * s, BF + 4 * s)
            tr(trl[:ntr])
        a(f'v_max3_f32 v8, v{AS}, v{AS+1}, v{AS+2}\nv_max_f32 v8, v8, v{AS+3}')
        a('ds_max_f32 v7, v8')
        a('s_waitcnt lgkmcnt(0)\ns_barrier')
        a('ds_read_b32 v8, v7')
        pfw(o['w1c'])
        n2 = min(o.get('tr_m', 8), len(trl) - ntr)
        tr(trl[ntr:ntr + n2])
        a(f's_waitcnt lgkmcnt({n2})')
        a('v_mul_f32 v20, s72, v8')
        for r in range(4):
            a(f'v_fma_f32 v{AS+r}, v{AS+r}, s72, -v20')
        for r in range(4):
            a(f'v_exp_f32 v{AS+r}, v{AS+r}')
        a(f'v_cvt_pk_bf16_f32 v8, v{AS}, v{AS+1}\nv_cvt_pk_bf16_f32 v9, v{AS+2}, v{AS+3}')
        a('ds_write_b64 v17, v[8:9]')
        a(f'v_add_f32 v10, v{AS}, v{AS+1}\nv_add_f32 v11, v{AS+2}, v{AS+3}\nv_add_f32 v10, v10, v11')
        a('v_mul_f32 v10, 0x4b800000, v10\nv_cvt_u32_f32 v10, v10')
        a('ds_add_u32 v7, v10 offset:64')
        n3 = len(trl) - ntr - n2
        tr(trl[ntr + n2:])
        a(f's_waitcnt lgkmcnt({n3})\ns_barrier')
        for t in range(4):
            a(f'ds_read_b128 v[{SO+4*t}:{SO+4*t+3}], v{232+t}')
        a('ds_read_b32 v21, v7 offset:64')
        for t in range(4):
            a(f's_waitcnt lgkmcnt({4-t})')
            for ct in range(4):
                self.mfma(AP + 4 * ct, PV + 16 * ct + 4 * t, SO + 4 * t, t == 0)
        sk = self.lab('aml')
        a(f's_cmp_lg_u32 s35, 0\ns_cbranch_scc1 {sk}')
        a('s_waitcnt lgkmcnt(0)')
        a('v_cvt_f32_u32 v21, v21\nv_mul_f32 v21, 0x33800000, v21')
        a('s_mov_b64 exec, 0xffff')
        a('buffer_store_dwordx2 v[20:21], v19, s[40:43], s58 offen sc1')
        a('s_mov_b64 exec, -1')
        a.label(sk)
        for p in range(2):
            for c2 in range(2):
                d = AP + 8 * p + 4 * c2
                a(f'v_cvt_pk_bf16_f32 v{8+4*p+2*c2}, v{d}, v{d+1}\nv_cvt_pk_bf16_f32 v{9+4*p+2*c2}, v{d+2}, v{d+3}')
        for p in range(2):
            a(f'v_permlane16_swap_b32 v{8+4*p}, v{10+4*p}\nv_permlane16_swap_b32 v{9+4*p}, v{11+4*p}')
            a(f'buffer_store_dwordx4 v[{8+4*p}:{11+4*p}], v18, s[40:43], s57 offen offset:{64*p} sc1')
        self.stamp(9)
        self.last_gemv()
        fin_end = self.lab('finend')
        a(f's_lshl_b32 s64, s39, 6\ns_add_u32 s38, s38, s64\ns_cmp_ge_u32 s38, {NFIN}\ns_cbranch_scc1 {fin_end}')
        self.srd(48, 28, 2304)
        a('s_lshl_b32 s56, s38, 5\nv_lshlrev_b32 v6, 1, v3\nv_add_u32 v7, s56, v6')
        a('global_load_ushort v20, v7, s[8:9]')
        a('v_lshrrev_b32 v4, 2, v0\nv_mul_u32_u24 v4, 4608, v4\nv_and_b32 v5, 3, v0\nv_lshl_add_u32 v4, v5, 4, v4')
        a(f's_lshl_b32 s57, s38, 6\ns_add_u32 s57, s57, {WS_CP}')
        a(f'v_lshl_add_u32 v5, v5, 2, v2\nv_lshlrev_b32 v5, 5, v5\ns_lshl_b32 s64, s35, 2\nv_add_u32 v5, s64, v5')
        a('v_lshlrev_b32 v7, 5, v3')
        lp, done = self.lab('fp'), self.lab('fpd')
        a(f's_mov_b32 s66, {self.tmo}')
        a.label(lp)
        a('buffer_load_dwordx4 v[8:11], v4, s[40:43], s57 offen sc1')
        a('s_sub_u32 s66, s66, 1\ns_cmp_eq_u32 s66, 0\ns_waitcnt vmcnt(0)')
        a(f's_cbranch_scc1 {done}')
        a('v_xor_b32 v12, s74, v8\nv_xor_b32 v13, s74, v9\nv_xor_b32 v14, s75, v10\nv_xor_b32 v15, s75, v11')
        a('v_or3_b32 v12, v12, v13, v14\nv_and_or_b32 v12, v15, s76, v12\nv_and_b32 v12, s76, v12')
        a(f'v_cmp_ne_u32 vcc, 0, v12\ns_cbranch_vccnz {lp}')
        a.label(done)
        for r in range(4):
            a(f'v_and_b32 v{8+r}, 0xfffff000, v{8+r}')
        for m in ('row_ror:4', 'row_ror:8'):
            for r in range(4):
                a(f'v_add_f32_dpp v{8+r}, v{8+r}, v{8+r} {m} {DPPM}')
        a('v_permlane16_swap_b32 v8, v9\nv_permlane16_swap_b32 v10, v11')
        a('v_add_f32 v8, v8, v9\nv_add_f32 v10, v10, v11')
        a('v_permlane32_swap_b32 v8, v10')
        a('v_add_f32 v8, v8, v10')
        a('ds_write_b32 v5, v8')
        a('s_waitcnt lgkmcnt(0)\ns_barrier')
        a(f's_cmp_lg_u32 s35, 0\ns_cbranch_scc1 {fin_end}')
        a('ds_read_b128 v[12:15], v7 offset:16\nds_read_b128 v[8:11], v7')
        a('v_lshlrev_b32 v20, 16, v20')
        a('s_waitcnt lgkmcnt(1)')
        a('v_pk_add_f32 v[12:13], v[12:13], v[14:15]\nv_add_f32 v12, v12, v13')
        a('v_cvt_pk_bf16_f32 v12, v12, v12\nv_lshlrev_b32 v12, 16, v12')
        a(f'v_mul_f32 v13, {hx(-math.log2(math.e))}, v12\nv_exp_f32 v13, v13')
        a('s_waitcnt lgkmcnt(0)')
        a('v_pk_add_f32 v[8:9], v[8:9], v[10:11]')
        a('v_add_f32 v13, 1.0, v13\nv_rcp_f32 v13, v13')
        a('v_add_f32 v8, v8, v9\nv_cvt_pk_bf16_f32 v8, v8, v8\nv_lshlrev_b32 v8, 16, v8')
        a('v_mul_f32 v12, v12, v13\nv_cvt_pk_bf16_f32 v12, v12, v12\nv_lshlrev_b32 v12, 16, v12')
        a('v_mul_f32 v8, v8, v12\nv_cvt_pk_bf16_f32 v8, v8, v8\nv_lshlrev_b32 v8, 16, v8')
        a('v_add_f32 v8, v8, v20\nv_cvt_pk_bf16_f32 v8, v8, v8')
        a('s_mov_b64 exec, 0xffff')
        a('buffer_store_short v8, v6, s[48:51], s56 offen')
        self.stamp(10)
        sk = self.lab('cep')
        a(f's_cmp_lg_u32 s38, 0\ns_cbranch_scc1 {sk}')
        a('s_mov_b64 exec, 1\nv_mov_b32 v8, s60')
        a(f'buffer_store_dword v8, v1, s[40:43], 0 offen offset:{WS_EPOCH}')
        a.label(sk)
        a('s_mov_b64 exec, -1')
        if self.o.get('spin'):
            sk2 = self.lab('spin')
            a(f's_cmp_lg_u32 s38, 0\ns_cbranch_scc1 {fin_end}')
            a('s_memrealtime s[92:93]\ns_waitcnt lgkmcnt(0)\ns_sub_u32 s94, s92, s90\ns_mul_i32 s94, s94, 10\ns_add_u32 s94, s94, s92')
            a.label(sk2)
            a(f's_memrealtime s[92:93]\ns_waitcnt lgkmcnt(0)\ns_cmp_lt_u32 s92, s94\ns_cbranch_scc1 {sk2}')
        a.label(fin_end)
        self.write_stamps()
        a('s_endpgm')

    def last_gemv(self):
        a, o = self.a, self.o
        W, AFR, ACC, VL = 32, 104, 140, UP
        a('s_and_b32 s74, s60, 0xfff\ns_xor_b32 s75, s74, 0xfff\ns_mov_b32 s76, 0xfff')
        a(f's_lshl_b32 s64, s39, 6\ns_add_u32 s64, s64, s38\ns_mul_i32 s64, s64, 4608\ns_lshl_b32 s65, s35, 9\ns_add_u32 s64, s64, s65\ns_add_u32 s57, s64, {WS_CP}')
        join = self.lab('lgj')
        other = self.lab('lgo')
        a('s_barrier')
        a(f's_cmp_eq_u32 s39, 0\ns_cbranch_scc1 {join}')
        for hg, S, ptr in ((1, 9, 26),):
            nxt = self.lab('lgn')
            if hg == 0:
                a(f's_cmp_lg_u32 s39, 0\ns_cbranch_scc1 {nxt}')
            prod, vec = self.lab('lgp'), self.lab('lgv')
            a(f's_cmp_gt_u32 s35, 4\ns_cbranch_scc1 {prod}')
            a(f's_mul_i32 s56, s38, {8*S*1152}')
            self.srd(48, ptr, (4096 if hg == 0 else 4608) * 1152, 's56')
            a(f'v_lshrrev_b32 v4, 1, v2\nv_mul_u32_u24 v4, {2*S}, v4\nv_and_b32 v5, 1, v2\nv_add_u32 v4, v4, v5\nv_mul_u32_u24 v4, 1152, v4')
            a(f'v_lshl_add_u32 v4, v3, 4, v4\ns_lshl_b32 s64, s35, 8\nv_add_u32 v4, s64, v4\ns_mov_b32 s64, 0\ns_mov_b32 s65, {4*S*1152}')
            if o['y_first']:
                self.hold(3, 2, sleep=0)
            a('s_cmp_eq_u32 s35, 4\ns_cselect_b32 s70, 0x00ff00ff, -1\ns_mov_b32 s71, s70\ns_mov_b64 exec, s[70:71]')
            for st in range(S):
                for hf in range(2):
                    r = W + 8 * st + 4 * hf
                    a(f'buffer_load_dwordx4 v[{r}:{r+3}], v4, s[48:51], s{64+hf} offen {"nt" if o["lg_nt"] else ""}')
                if st < S - 1:
                    a('s_add_u32 s64, s64, 2304\ns_add_u32 s65, s65, 2304')
            a('s_mov_b64 exec, -1')
            self.masks_smf()
            a(f'v_lshrrev_b32 v5, 3, v3\nv_mul_u32_u24 v5, {16*S}, v5\nv_mad_u32_u24 v5, v2, {4*S}, v5\nv_add_u32 v5, {VL}, v5')
            a('v_lshrrev_b32 v6, 5, v1\nv_mul_u32_u24 v6, 2304, v6\nv_lshl_add_u32 v6, v3, 5, v6\nv_and_b32 v7, 1, v2\nv_lshl_add_u32 v6, v7, 4, v6')
            a('v_mov_b32 v18, s74\nv_mov_b32 v19, s75')
            for r in range(4):
                a(f'v_mov_b32 v{ACC+r}, 0')
            a(f's_branch {vec}')
            a.label(prod)
            lp, done = self.lab('lgl'), self.lab('lgd')
            if hg == 0:
                a(f's_cmp_lg_u32 s35, 5\ns_cbranch_scc1 {vec}')
                a(f'v_lshlrev_b32 v4, 4, v1\ns_lshl_b32 s70, s38, 10\ns_add_u32 s70, s70, {WS_DX}')
                a(f'v_and_b32 v5, 31, v1\nv_lshlrev_b32 v5, 3, v5\nv_add_u32 v5, {VL}, v5')
                a(f'v_mov_b32 v{SLO}, 0x05040100\ns_mov_b32 s66, {self.tmo}')
                a.label(lp)
                a('buffer_load_dwordx4 v[8:11], v4, s[40:43], s70 offen sc1')
                a('s_sub_u32 s66, s66, 1\ns_cmp_eq_u32 s66, 0\ns_waitcnt vmcnt(0)')
                a(f's_cbranch_scc1 {done}')
                a(f'v_perm_b32 v12, v9, v8, v{SLO}\nv_perm_b32 v13, v11, v10, v{SLO}')
                a('v_xor_b32 v12, s60, v12\nv_xor_b32 v13, s61, v13\nv_or_b32 v12, v12, v13')
                a(f'v_cmp_ne_u32 vcc, 0, v12\ns_cbranch_vccnz {lp}')
                a.label(done)
                self.stamp(5, True)
                for r in range(4):
                    a(f'v_and_b32 v{8+r}, 0xffff0000, v{8+r}')
                a('v_permlane32_swap_b32 v8, v10\nv_permlane32_swap_b32 v9, v11')
                a('v_add_f32 v8, v8, v10\nv_add_f32 v9, v9, v11')
                a('v_cvt_pk_bf16_f32 v8, v8, v9')
                a('v_lshrrev_b32 v6, 5, v1\nv_lshl_add_u32 v5, v6, 2, v5')
                a('ds_write_b32 v5, v8')
            else:
                a('v_subrev_u32 v6, 320, v0\nv_min_u32 v6, 143, v6\nv_lshrrev_b32 v7, 2, v6\nv_and_b32 v6, 3, v6\nv_mul_u32_u24 v26, 9216, v6')
                a(f'v_cmp_lt_u32 vcc, 17, v7\nv_cndmask_b32 v8, 0, 1, vcc\nv_mul_u32_u24 v9, {4608 - 18*16}, v8\nv_lshl_add_u32 v26, v7, 4, v26\nv_add_u32 v26, v26, v9')
                a(f's_lshr_b32 s64, s38, 3\ns_mul_i32 s64, s64, {8*9216}\ns_and_b32 s65, s38, 7\ns_mul_i32 s65, s65, 288\ns_add_u32 s64, s64, s65\ns_add_u32 s70, s64, {WS_LP}')
                a(f's_add_u32 s71, s70, {4*9216}')
                a(f'v_lshl_add_u32 v27, v7, 2, v6\nv_lshlrev_b32 v27, 1, v27\nv_add_u32 v27, {VL}, v27')
                a('v_cmp_eq_u32 s[78:79], 1, v6\nv_cmp_eq_u32 s[72:73], 2, v6\nv_cmp_eq_u32 s[68:69], 3, v6')
                a(f's_mov_b32 s66, {self.tmo}')
                a.label(lp)
                for k in range(4):
                    a(f'buffer_load_dwordx4 v[{32+4*k}:{35+4*k}], v26, s[40:43], s{70 + (k>>1)} offen offset:{2304*(k&1)} sc1')
                self.bump(2)
                a('s_sub_u32 s66, s66, 1\ns_cmp_eq_u32 s66, 0\ns_waitcnt vmcnt(0)')
                a(f's_cbranch_scc1 {done}')
                for r in range(16):
                    a(f'v_xor_b32 v{48+r}, s{74 + ((r>>1)&1)}, v{32+r}')
                for r in range(1, 15, 2):
                    a(f'v_or3_b32 v48, v48, v{48+r}, v{49+r}')
                a('v_or_b32 v48, v48, v63\nv_and_b32 v48, s76, v48')
                a(f'v_cmp_ne_u32 vcc, 0, v48\ns_cbranch_vccz {done}')
                a(f's_sleep 4\ns_branch {lp}')
                a.label(done)
                self.stamp(5, True)
                for r in range(16):
                    a(f'v_and_b32 v{32+r}, 0xfffff000, v{32+r}')
                for r in range(0, 8, 2):
                    a(f'v_pk_add_f32 v[{32+r}:{33+r}], v[{32+r}:{33+r}], v[{40+r}:{41+r}]')
                for m in ('quad_perm:[1,0,3,2]', 'quad_perm:[2,3,0,1]'):
                    for r in range(8):
                        a(f'v_add_f32_dpp v{32+r}, v{32+r}, v{32+r} {m} {DPPM}')
                for base in (32, 36):
                    a(f'v_cndmask_b32 v{base}, v{base}, v{base+1}, s[78:79]\nv_cndmask_b32 v{base}, v{base}, v{base+2}, s[72:73]\nv_cndmask_b32 v{base}, v{base}, v{base+3}, s[68:69]')
                k1 = hx(0.044715)
                k2 = hx(-2.0 * math.sqrt(2.0 / math.pi) * math.log2(math.e))
                a('v_cvt_pk_bf16_f32 v9, v32, v36\nv_lshlrev_b32 v8, 16, v9\nv_and_b32 v12, 0xffff0000, v9')
                a(f'v_mul_f32 v9, v8, v8\nv_mul_f32 v9, {k1}, v9\nv_fma_f32 v9, v9, v8, v8\nv_mul_f32 v9, {k2}, v9')
                a('v_exp_f32 v9, v9\nv_add_f32 v9, 1.0, v9\nv_rcp_f32 v9, v9\nv_mul_f32 v8, v8, v9')
                a('v_cvt_pk_bf16_f32 v8, v8, v8\nv_lshlrev_b32 v8, 16, v8\nv_mul_f32 v8, v8, v12\nv_cvt_pk_bf16_f32 v8, v8, v8')
                a('s_cmp_eq_u32 s35, 7\ns_cselect_b32 exec_lo, 0xffff, -1\ns_cselect_b32 exec_hi, 0, -1\nds_write_b16 v27, v8\ns_mov_b64 exec, -1')
            a.label(vec)
            a('s_waitcnt lgkmcnt(0)\ns_barrier')
            a(f's_cmp_gt_u32 s35, 4\ns_cbranch_scc1 {join}')
            if hg == 0:
                a('ds_read_b128 v[8:11], v5\nds_read_b128 v[12:15], v5 offset:16')
            else:
                for k in range(4):
                    a(f'ds_read2_b32 v[{8+2*k}:{9+2*k}], v5 offset0:{2*k} offset1:{2*k+1}')
                a('ds_read_b32 v16, v5 offset:32')
            a('s_waitcnt vmcnt(0)')
            for st in range(S):
                if st == 0:
                    a(f's_waitcnt lgkmcnt({1 if hg == 0 else 3})')
                if st == 4:
                    a('s_waitcnt lgkmcnt(0)')
                self.sfrag(AFR + 4 * (st & 1), 8 + st)
                self.smf(ACC, AFR + 4 * (st & 1), W + 8 * st)
            for r in range(4):
                a(f'v_add_u32 v{ACC+r}, 0x800, v{ACC+r}\nv_bfi_b32 v{ACC+r}, s76, v{18 + (r>>1)}, v{ACC+r}')
            a('s_mov_b64 exec, s[70:71]')
            a(f'buffer_store_dwordx4 v[{ACC}:{ACC+3}], v6, s[40:43], s57 offen sc1')
            a('s_mov_b64 exec, -1')
            self.stamp(6, True)
            if hg == 0:
                a(f's_branch {join}')
                a.label(nxt)
        a.label(join)

    def role_F(self):
        a, o = self.a, self.o
        W, AF, WD, WX, W8, XV, XV2 = 32, 104, 140, 180, 196, 188, 236
        ACC, ACC8 = 232, 228
        XN, HL, B8, R3 = 0, 4096, 8192, 16384
        a.label('L_roleF')
        self.hold(1)
        self.stat_read()
        a.label('L_F_go')
        a('s_setprio 0')
        a('s_sub_u32 s39, s37, 24\ns_lshl_b32 s38, s36, 3\ns_add_u32 s38, s38, s39')
        a('v_lshrrev_b32 v4, 3, v3\nv_mul_u32_u24 v4, 1152, v4\ns_lshl_b32 s64, s39, 2\nv_add_u32 v7, s64, v2\nv_mad_u32_u24 v7, v7, 36, v4')
        a(f'global_load_dwordx4 v[{XV}:{XV+3}], v7, s[8:9]')
        a(f'global_load_dwordx2 v[{XV+4}:{XV+5}], v7, s[8:9] offset:16')
        a(f'global_load_dwordx3 v[{XV2}:{XV2+2}], v7, s[8:9] offset:24')
        a('v_lshrrev_b32 v4, 1, v2\nv_mul_u32_u24 v4, 18, v4\nv_and_b32 v5, 1, v2\nv_add_u32 v4, v4, v5')
        a('s_mul_i32 s64, s39, 72\ns_lshl_b32 s65, s35, 1\ns_add_u32 s64, s64, s65\nv_add_u32 v4, s64, v4\nv_mul_u32_u24 v4, 9216, v4')
        a('s_mul_i32 s64, s36, 1152\nv_add_u32 v4, s64, v4')
        a('s_lshl_b32 s64, s35, 4\nv_add_u32 v5, s64, v3\nv_cmp_lt_u32 vcc, 71, v5\nv_subrev_u32 v6, 72, v5\nv_cndmask_b32 v5, v5, v6, vcc')
        a('v_lshl_add_u32 v22, v5, 4, v4\nv_mov_b32 v23, 0')
        a('v_mov_b32 v20, s22\nv_mov_b32 v21, s24\nv_cndmask_b32 v20, v20, v21, vcc')
        a('v_mov_b32 v21, s23\nv_mov_b32 v6, s25\nv_cndmask_b32 v21, v21, v6, vcc')
        a('v_lshl_add_u64 v[22:23], v[22:23], 0, v[20:21]')
        a(f's_mov_b32 s70, {36*9216}\ns_mov_b32 s71, 0\nv_lshl_add_u64 v[24:25], v[22:23], 0, s[70:71]')
        a(f'v_lshl_add_u32 v4, v3, 4, v4\nv_add_u32 v4, {56*16}, v4\nv_add_u32 v5, {36*9216}, v4')
        sk = self.lab('fgo')
        a(f's_cmp_eq_u32 s35, 0\ns_cbranch_scc1 {sk}')
        if o['f_pre'] == 0:
            self.hold(4)
        a.label(sk)
        sk = self.lab('fb8')
        a(f's_cmp_lg_u32 s35, 0\ns_cbranch_scc1 {sk}')
        a(f'v_add_u32 v6, {16*9216}, v4\nglobal_load_dwordx4 v[{W8+8}:{W8+11}], v6, s[24:25] nt')
        a(f'v_add_u32 v6, {16*9216}, v5\nglobal_load_dwordx4 v[{W8+12}:{W8+15}], v6, s[24:25] nt')
        a.label(sk)
        a(f'global_load_dwordx4 v[{W8}:{W8+3}], v4, s[24:25] nt')
        a(f'global_load_dwordx4 v[{W8+4}:{W8+7}], v5, s[24:25] nt')
        a('s_mov_b32 s72, s35')

        def bulk(s0, s1):
            for s in range(s0, s1):
                for hf in range(2):
                    r = W + 8 * s + 4 * hf
                    a(f'global_load_dwordx4 v[{r}:{r+3}], v[{22+2*hf}:{23+2*hf}], off nt')
                    if 2 * s + hf < o.get('f_thr', 0):
                        a(f's_waitcnt vmcnt({o.get("f_win", 0)})')
                if s < 8:
                    a(f's_cmp_eq_u32 s72, 8\ns_cselect_b32 s70, {(-18*9216) & 0xffffffff}, 0\ns_cselect_b32 s71, -1, 0\ns_cselect_b32 s72, -1, s72')
                    a(f's_add_u32 s70, s70, {2*9216}\ns_add_u32 s72, s72, 1')
                    for hf in range(2):
                        a(f'v_lshl_add_u64 v[{22+2*hf}:{23+2*hf}], v[{22+2*hf}:{23+2*hf}], 0, s[70:71]')
        nb = o.get('fp', 3)
        bulk(0, nb)
        self.stamp(1)
        a(f'v_lshrrev_b32 v6, 3, v3\nv_lshl_add_u32 v6, v6, 2, v2\nv_mul_u32_u24 v6, 72, v6\ns_mul_i32 s64, s35, 576\nv_add_u32 v6, s64, v6')
        a(f's_lshl_b32 s64, s35, 2\nv_add_u32 v7, s64, v6')
        a(f's_waitcnt vmcnt({2*nb + 2})')
        for k in range(9):
            xr = XV + k if k < 6 else XV2 + k - 6
            self.ln_pair(xr, xr)
            a(f'ds_write2_b32 v6, v{xr}, v{xr} offset0:{k} offset1:{k+9}')
        for k in range(4):
            a(f'ds_read2_b32 v[{8+2*k}:{9+2*k}], v7 offset0:{2*k} offset1:{2*k+1}')
        a('ds_read_b32 v16, v7 offset:32')
        for r in range(4):
            a(f'v_mov_b32 v{ACC+r}, 0\nv_mov_b32 v{ACC8+r}, 0')
        a('s_waitcnt lgkmcnt(0)')
        for k in range(9):
            self.sfrag(AF + 4 * k, 8 + k)
        a('v_lshrrev_b32 v6, 5, v1\nv_mul_u32_u24 v6, 4608, v6\nv_lshl_add_u32 v6, v3, 5, v6\nv_and_b32 v7, 1, v2\nv_lshl_add_u32 v6, v7, 4, v6')
        a(f's_mul_i32 s65, s38, 9216\ns_add_u32 s65, s65, {WS_LP}\ns_lshl_b32 s64, s35, 9\ns_add_u32 s58, s65, s64\ns_add_u32 s59, s65, 4096')
        a('s_and_b32 s74, s60, 0xfff\ns_xor_b32 s75, s74, 0xfff\ns_mov_b32 s76, 0xfff\nv_mov_b32 v18, s74\nv_mov_b32 v19, s75')
        a(f's_lshl_b32 s64, s35, 10\ns_add_u32 s64, s64, {B8}\nv_lshl_add_u32 v7, v1, 4, s64')
        a(f's_waitcnt vmcnt({2*nb})')
        self.smf(ACC8, AF, W8)
        sk = self.lab('fb8')
        a(f's_cmp_lg_u32 s35, 0\ns_cbranch_scc1 {sk}')
        self.smf(ACC8, AF + 32, W8 + 8)
        a.label(sk)
        a(f'ds_write_b128 v7, v[{ACC8}:{ACC8+3}]')
        if o.get('f_g'):
            self.gate('s39')
        self.stamp(2)
        bulk(nb, 9)
        a('s_waitcnt lgkmcnt(0)\ns_barrier')
        sk = self.lab('fb8')
        a(f's_cmp_lg_u32 s35, 0\ns_cbranch_scc1 {sk}')
        for p in range(8):
            a(f'ds_read_b128 v[{WD+4*p}:{WD+4*p+3}], v7 offset:{1024*p}')
        for p in range(1, 8):
            a(f's_waitcnt lgkmcnt({7-p})')
            a(f'v_pk_add_f32 v[{WD}:{WD+1}], v[{WD}:{WD+1}], v[{WD+4*p}:{WD+4*p+1}]')
            a(f'v_pk_add_f32 v[{WD+2}:{WD+3}], v[{WD+2}:{WD+3}], v[{WD+4*p+2}:{WD+4*p+3}]')
        for r in range(4):
            a(f'v_add_u32 v{ACC8+r}, 0x800, v{WD+r}\nv_bfi_b32 v{ACC8+r}, s76, v{18 + (r>>1)}, v{ACC8+r}')
        a.label(sk)
        n1 = 0

        def fpf(k):
            if k & 1:
                a('v_min_u32 v4, 287, v0\nv_lshlrev_b32 v4, 7, v4\ns_mul_i32 s64, s38, 73728\ns_add_u32 s64, s64, 36864\nv_add_u32 v4, s64, v4')
                a('global_load_dword v194, v4, s[18:19]')
            if k & 2:
                a('v_min_u32 v4, 323, v0\nv_lshlrev_b32 v4, 7, v4\ns_mul_i32 s64, s38, 82944\ns_add_u32 s64, s64, 41472\nv_add_u32 v4, s64, v4')
                a('global_load_dword v194, v4, s[26:27]')
            return (k & 1) + (k >> 1)
        n1 = fpf(o['f_pf'])
        self.stamp(7)
        for s in range(9):
            a(f's_waitcnt vmcnt({2*(8-s) + n1})')
            self.smf(ACC, AF + 4 * s, W + 8 * s)
        a('s_setprio 2')
        for r in range(4):
            a(f'v_add_u32 v{ACC+r}, 0x800, v{ACC+r}\nv_bfi_b32 v{ACC+r}, s76, v{18 + (r>>1)}, v{ACC+r}')
        a(f'buffer_store_dwordx4 v[{ACC}:{ACC+3}], v6, s[40:43], s58 offen sc1')
        sk = self.lab('fb8')
        a(f's_cmp_lg_u32 s35, 0\ns_cbranch_scc1 {sk}')
        a(f'buffer_store_dwordx4 v[{ACC8}:{ACC8+3}], v6, s[40:43], s59 offen sc1')
        a.label(sk)
        self.stamp(8)
        if o['f_pf2']:
            a('s_barrier')
            fpf(o['f_pf2'])
        self.write_stamps()

    def build(self):
        a = self.a
        a.raw(f'; @launch grid=(256,1,1) block=(512,1,1) lds={LDS_BYTES}')
        a.raw('.amdgcn_target "amdgcn-amd-amdhsa--gfx950"')
        a.raw(f'.text\n.globl {KN}\n.p2align 8\n.type {KN},@function\n{KN}:')
        if self.o.get('spin'):
            a('s_memrealtime s[90:91]')
        self.prologue()
        self.role_H()
        self.role_A()
        self.role_F()
        a.label('L_end')
        a('s_endpgm')
        a.raw('.section .rodata,"a"\n.p2align 6')
        a.raw(f'.amdhsa_kernel {KN}')
        a.raw('  .amdhsa_next_free_vgpr 256\n  .amdhsa_next_free_sgpr 102\n  .amdhsa_accum_offset 256')
        a.raw('  .amdhsa_group_segment_fixed_size 0\n  .amdhsa_kernarg_size 104\n  .amdhsa_user_sgpr_count 2')
        a.raw('  .amdhsa_user_sgpr_kernarg_segment_ptr 1\n  .amdhsa_system_sgpr_workgroup_id_x 1')
        a.raw('  .amdhsa_float_denorm_mode_32 3')
        a.raw('.end_amdhsa_kernel')
        return a.text()


if __name__ == '__main__':
    stamps = '--stamps' in sys.argv
    opt = {}
    for x in sys.argv[1:]:
        if '=' in x:
            k, v = x.lstrip('-').split('=')
            opt[k] = int(v)
    out = [x for x in sys.argv[1:] if not x.startswith('--') and '=' not in x]
    t = Gen(stamps, opt).build()
    if out:
        open(out[0], 'w').write(t)
    else:
        sys.stdout.write(t)
```
